```python
import torch

def _softmax(x, axis=-1):
    return torch.softmax(x, dim=axis)

def _gelu(x):
    return torch.nn.functional.gelu(x, approximate='tanh')

def _silu(x):
    return torch.nn.functional.silu(x)

def _sigmoid(x):
    return torch.sigmoid(x)

def _layernorm(x, axis=-1, eps=1e-05):
    m = x.mean(dim=axis, keepdim=True)
    v = x.var(dim=axis, keepdim=True, unbiased=False)
    return (x - m) / torch.sqrt(v + eps)

def _scatter_add(tgt, idx, src, axis=0):
    return tgt.clone().index_add_(axis, idx, src)

def _segment_sum(src, seg, n):
    out = torch.zeros((n,) + src.shape[1:], dtype=src.dtype)
    return out.index_add_(0, seg, src)

def _pad(x, pw):
    flat = tuple((v for pair in reversed(pw) for v in pair))
    return torch.nn.functional.pad(x, flat)
kernel_name = 'standalone__video_videomae__vision'

def setup_inputs():

    _w = lambda a: (lambda t: t.to(torch.bfloat16) if t.is_floating_point() else t)(torch.as_tensor(a))
    T = 4
    N = 384
    C = max(384 // 4 * 4, 8)
    sc = C ** (-0.5)
    return {'x': _w((lambda *s: torch.randn(*s, dtype=torch.bfloat16) * 1.6)(1, T, N, C)), 'w_qkv_t': _w((lambda *s: torch.randn(*s, dtype=torch.bfloat16) * 1.6)(C, 3 * C) * sc), 'w_proj_t': _w((lambda *s: torch.randn(*s, dtype=torch.bfloat16) * 1.6)(C, C) * sc), 'w_qkv_s': _w((lambda *s: torch.randn(*s, dtype=torch.bfloat16) * 1.6)(C, 3 * C) * sc), 'w_proj_s': _w((lambda *s: torch.randn(*s, dtype=torch.bfloat16) * 3.2)(C, C) * sc), 'w1': _w((lambda *s: torch.randn(*s, dtype=torch.bfloat16) * 3.2)(C, 4 * C) * sc), 'w2': _w((lambda *s: torch.randn(*s, dtype=torch.bfloat16) * 0.8)(4 * C, C) * sc)}

def reference(x, w_qkv_t, w_proj_t, w_qkv_s, w_proj_s, w1, w2):
    B, T, N, C = x.shape
    Hd = 4
    D = C // Hd
    scale = D ** (-0.5)
    h = _layernorm(x, axis=-1)
    qkv = torch.einsum('btnc,ce->btne', h, w_qkv_t).reshape(B, T, N, 3, Hd, D)
    q = qkv[:, :, :, 0, :, :].clone()
    k = qkv[:, :, :, 1, :, :].clone()
    v = qkv[:, :, :, 2, :, :].clone()
    a = torch.einsum('btnhd,bsnhd->bnhts', q, k) * scale
    a = _softmax(a, axis=-1)
    o = torch.einsum('bnhts,bsnhd->btnhd', a, v).reshape(B, T, N, C)
    x = x + torch.einsum('btnc,ce->btne', o, w_proj_t)
    h = _layernorm(x, axis=-1)
    qkv = torch.einsum('btnc,ce->btne', h, w_qkv_s).reshape(B, T, N, 3, Hd, D)
    q = qkv[:, :, :, 0, :, :].clone()
    k = qkv[:, :, :, 1, :, :].clone()
    v = qkv[:, :, :, 2, :, :].clone()
    a = torch.einsum('btnhd,btmhd->bthnm', q, k) * scale
    a = _softmax(a, axis=-1)
    o = torch.einsum('bthnm,btmhd->btnhd', a, v).reshape(B, T, N, C)
    x = x + torch.einsum('btnc,ce->btne', o, w_proj_s)
    h = _layernorm(x, axis=-1)
    return x + _gelu(h @ w1) @ w2
```

```python
import struct
KB = 1024
off = 0
def alloc(n):
    global off
    o = off; off += (n + 4095) // 4096 * 4096
    return o
WF_PT = alloc(288*KB); WF_QS = alloc(864*KB); WF_PS = alloc(288*KB); WF_1 = alloc(1152*KB); WF_2 = alloc(1152*KB)
CS_QS = alloc(1152*4); CS_1 = alloc(1536*4)
OT = alloc(1152*KB); X1 = alloc(1152*KB); ST1 = alloc(96*KB)
QF = alloc(1152*KB); KF = alloc(1152*KB); VF = alloc(1152*KB)
OS = alloc(1152*KB); X2 = alloc(1152*KB); ST2 = alloc(96*KB)
HID = alloc(4608*KB)
WS_USED = off
def f2u(x): return struct.unpack('<I', struct.pack('<f', x))[0]
def hx(x): return '0x%x' % (x & 0xffffffff)

class Asm:
    def __init__(s): s.l = []
    def __call__(s, t):
        for ln in t.strip('\n').split('\n'): s.l.append('    ' + ln.strip())
    def label(s, n): s.l.append(n + ':')
    def srd(s, d, p, nbytes):
        s(f's_mov_b32 s{d}, s{p}\ns_and_b32 s{d+1}, s{p+1}, 0xffff\ns_mov_b32 s{d+2}, {hx(nbytes)}\ns_mov_b32 s{d+3}, 0x20000')
    def text(s): return '\n'.join(s.l) + '\n'
def vr(b, n): return f'v[{b}:{b+n-1}]'
def mfma32(d, a, b, c=None):
    return f'v_mfma_f32_16x16x32_bf16 {vr(d,4)}, {vr(a,4)}, {vr(b,4)}, {vr(d,4) if c is None else c}'
def red_g(A, x, t, op):
    A(f'v_mov_b32 v{t}, v{x}\ns_nop 1\nv_permlane16_swap_b32 v{x}, v{t}\ns_nop 1\n{op} v{x}, v{x}, v{t}')
    A(f'v_mov_b32 v{t}, v{x}\ns_nop 1\nv_permlane32_swap_b32 v{x}, v{t}\ns_nop 1\n{op} v{x}, v{x}, v{t}')
def kdesc(name, vg, sg=64, acc=None):
    acc = acc or (vg + 3) // 4 * 4
    return f'''.p2align 6
.amdhsa_kernel {name}
  .amdhsa_next_free_vgpr {vg}
  .amdhsa_next_free_sgpr {sg}
  .amdhsa_accum_offset {acc}
  .amdhsa_group_segment_fixed_size 0
  .amdhsa_kernarg_size 80
  .amdhsa_user_sgpr_count 2
  .amdhsa_user_sgpr_kernarg_segment_ptr 1
  .amdhsa_system_sgpr_workgroup_id_x 1
.end_amdhsa_kernel
'''
```

```python
from common import *
def gen_g48(name, KS, A_off, W_off, res, dst, st):
    A = Asm(); KW = KS // 3; RS = min(KW, 8)
    A(f's_cmp_ge_u32 s2, 256\ns_cbranch_scc1 {name}_end')
    A('s_load_dwordx2 s[4:5], s[0:1], 0\ns_load_dwordx2 s[6:7], s[0:1], 56\ns_load_dwordx2 s[8:9], s[0:1], 72')
    A('v_lshrrev_b32 v1, 6, v0\nv_and_b32 v0, 63, v0\ns_and_b32 s10, s2, 7\nv_readfirstlane_b32 s3, v1')
    A('s_lshr_b32 s11, s2, 3\ns_lshr_b32 s12, s10, 1\ns_lshl_b32 s12, s12, 3\ns_and_b32 s13, s11, 7\ns_add_u32 s12, s12, s13')
    A('s_and_b32 s13, s10, 1\ns_lshl_b32 s13, s13, 2\ns_lshr_b32 s11, s11, 3\ns_add_u32 s13, s13, s11')
    A('v_lshlrev_b32 v1, 4, v0\nv_lshrrev_b32 v2, 4, v0\nv_and_b32 v3, 15, v0')
    A('s_mul_i32 s12, s12, 3\ns_mul_i32 s14, s13, 3')
    A(f's_mul_i32 s15, s3, {KW*KB}')
    A('s_mov_b32 s16, s3\ns_add_u32 s17, s3, 1\ns_cmp_ge_u32 s17, 3\ns_cselect_b32 s17, 0, s17\ns_add_u32 s18, s17, 1\ns_cmp_ge_u32 s18, 3\ns_cselect_b32 s18, 0, s18')
    for a in range(3):
        A(f's_add_u32 s{32+a}, s12, s{16+a}\ns_mul_i32 s{32+a}, s{32+a}, {KS*KB}\ns_add_u32 s{32+a}, s{32+a}, s15\ns_add_u32 s{32+a}, s{32+a}, {A_off}')
        A(f's_add_u32 s{35+a}, s14, {a}\ns_mul_i32 s{35+a}, s{35+a}, {KS*KB}\ns_add_u32 s{35+a}, s{35+a}, s15\ns_add_u32 s{35+a}, s{35+a}, {W_off}')
    A('s_add_u32 s19, s12, s3')
    for b in range(3):
        A(f's_add_u32 s42, s14, {b}\ns_lshr_b32 s43, s42, 1\ns_mul_i32 s{38+b}, s19, 12\ns_add_u32 s{38+b}, s{38+b}, s43\ns_lshl_b32 s{38+b}, s{38+b}, 10\ns_and_b32 s42, s42, 1\ns_lshl_b32 s42, s42, 3\ns_add_u32 s{38+b}, s{38+b}, s42')
    A('v_mul_u32_u24 v4, 768, v3\nv_lshl_add_u32 v4, v2, 3, v4\ns_mul_i32 s41, s19, 12288\ns_lshl_b32 s42, s14, 5\ns_add_u32 s41, s41, s42')
    A('s_waitcnt lgkmcnt(0)')
    A.srd(20, 8, WS_USED)
    if res == 'x': A.srd(24, 4, 1536*768)
    if dst == 'out': A.srd(28, 6, 1536*768)
    RES = 8; ACC = 16; FR = 52
    for b in range(3):
        if res == 'x': A(f'buffer_load_dwordx2 {vr(RES+2*b,2)}, v4, s[24:27], s41 offen offset:{32*b}')
        else: A(f's_add_u32 s42, s{38+b}, {res}\nbuffer_load_dwordx2 {vr(RES+2*b,2)}, v1, s[20:23], s42 offen')
    def loads(j):
        for i in range(6): A(f'buffer_load_dwordx4 {vr(FR+(j%RS)*24+4*i,4)}, v1, s[20:23], s{32+i} offen offset:{(j%4)*1024}')
        if j % 4 == 3 and j+1 < KW:
            for i in range(6): A(f's_add_u32 s{32+i}, s{32+i}, 4096')
    for j in range(RS): loads(j)
    for j in range(KW):
        A(f's_waitcnt vmcnt({6*(min(KW, j+RS)-j-1)})')
        f = FR+(j%RS)*24
        for a in range(3):
            for b in range(3): A(mfma32(ACC+(a*3+b)*4, f+12+4*b, f+4*a, '0' if j == 0 else None))
        if j+RS < KW: loads(j+RS)
    A('s_mul_i32 s17, s17, 6144\ns_mul_i32 s18, s18, 6144\ns_add_u32 s18, s18, 3072\ns_mul_i32 s16, s16, 6144')
    A('v_add_u32 v5, s17, v1\nv_add_u32 v6, s18, v1\nv_add_u32 v7, s16, v1\ns_nop 4')
    for a in (1, 2):
        for b in range(3): A(f'ds_write_b128 v{4+a}, {vr(ACC+(a*3+b)*4,4)} offset:{1024*b}')
    A('s_waitcnt lgkmcnt(0)\ns_barrier')
    for i in range(6): A(f'ds_read_b128 {vr(FR+4*i,4)}, v7 offset:{1024*i}')
    T = FR+24
    for b in range(3):
        for i in range(2): A(f'v_lshlrev_b32 v{T+4*b+2*i}, 16, v{RES+2*b+i}\nv_and_b32 v{T+4*b+2*i+1}, 0xffff0000, v{RES+2*b+i}')
    A('s_waitcnt lgkmcnt(0)')
    for i in range(6):
        A(f'v_pk_add_f32 {vr(ACC+2*i,2)}, {vr(ACC+2*i,2)}, {vr(FR+2*i,2)}\nv_pk_add_f32 {vr(T+2*i,2)}, {vr(T+2*i,2)}, {vr(FR+12+2*i,2)}')
    for i in range(6):
        A(f'v_pk_add_f32 {vr(ACC+2*i,2)}, {vr(ACC+2*i,2)}, {vr(T+2*i,2)}\nv_cvt_pk_bf16_f32 v{RES+i}, v{ACC+2*i}, v{ACC+2*i+1}')
    for b in range(3):
        if dst == 'out': A(f'buffer_store_dwordx2 {vr(RES+2*b,2)}, v4, s[28:31], s41 offen offset:{32*b}')
        else: A(f's_add_u32 s42, s{38+b}, {dst}\nbuffer_store_dwordx2 {vr(RES+2*b,2)}, v1, s[20:23], s42 offen')
    if st is not None:
        for i in range(6): A(f'v_lshlrev_b32 v{ACC+2*i}, 16, v{RES+i}\nv_and_b32 v{ACC+2*i+1}, 0xffff0000, v{RES+i}')
        A(f'v_pk_add_f32 {vr(T,2)}, {vr(ACC,2)}, {vr(ACC+2,2)}\nv_pk_mul_f32 {vr(T+2,2)}, {vr(ACC,2)}, {vr(ACC,2)}')
        for i in range(2, 6): A(f'v_pk_add_f32 {vr(T,2)}, {vr(T,2)}, {vr(ACC+2*i,2)}')
        for i in range(1, 6): A(f'v_pk_fma_f32 {vr(T+2,2)}, {vr(ACC+2*i,2)}, {vr(ACC+2*i,2)}, {vr(T+2,2)}')
        A(f'v_add_f32 v{T}, v{T}, v{T+1}\nv_add_f32 v{T+1}, v{T+2}, v{T+3}')
        red_g(A, T, T+4, 'v_add_f32'); red_g(A, T+1, T+4, 'v_add_f32')
        A(f'v_lshlrev_b32 v5, 6, v0\ns_lshl_b32 s42, s19, 10\ns_lshl_b32 s43, s13, 3\ns_add_u32 s42, s42, s43\ns_add_u32 s42, s42, {st}')
        A(f's_mov_b64 exec, 0xffff\nbuffer_store_dwordx2 {vr(T,2)}, v5, s[20:23], s42 offen')
    A.label(f'{name}_end'); A('s_endpgm')
    return A.text(), max(FR+RS*24, T+12), 18432, 256, 192
```

```python
from common import *
def gen_g96(name, mode):
    A = Asm(); q = mode == 'qkv'
    NWG = 192 if q else 256; CPX = 3 if q else 4
    A_off, W_off, ST, CS = (X1, WF_QS, ST1, CS_QS) if q else (X2, WF_1, ST2, CS_1)
    TAB = 147456
    A(f's_cmp_ge_u32 s2, {NWG}\ns_cbranch_scc1 {name}_end')
    A('s_load_dwordx2 s[8:9], s[0:1], 72')
    A('v_mov_b32 v9, v0\nv_lshrrev_b32 v1, 6, v0\nv_and_b32 v0, 63, v0\ns_and_b32 s10, s2, 7\nv_readfirstlane_b32 s3, v1')
    A('s_lshr_b32 s11, s2, 3\ns_and_b32 s12, s10, 1\ns_lshl_b32 s12, s12, 3\ns_and_b32 s13, s11, 7\ns_add_u32 s12, s12, s13')
    A(f's_lshr_b32 s13, s10, 1\ns_mul_i32 s13, s13, {CPX}\ns_lshr_b32 s11, s11, 3\ns_add_u32 s13, s13, s11')
    A('v_lshlrev_b32 v1, 4, v0\nv_lshrrev_b32 v2, 4, v0\nv_and_b32 v3, 15, v0')
    A(f's_mul_i32 s14, s12, {72*KB}\ns_add_u32 s14, s14, {A_off}\ns_mul_i32 s15, s13, {72*KB}\ns_add_u32 s15, s15, {W_off - 72*KB}')
    for i in range(4):
        A(f's_add_u32 s16, s3, {9*i}\ns_mov_b32 s17, 0')
        for _ in range(2): A('s_cmp_ge_u32 s16, 12\ns_cselect_b32 s18, 12, 0\ns_cselect_b32 s19, 1024, 0\ns_sub_u32 s16, s16, s18\ns_add_u32 s17, s17, s19')
        A(f's_mul_i32 s{32+i}, s16, 12288\ns_add_u32 s{32+i}, s{32+i}, s17\ns_cmp_ge_u32 s16, 6\ns_cselect_b32 s18, s15, s14\ns_add_u32 s{36+i}, s{32+i}, s18')
    A('s_mul_i32 s40, s3, 11\ns_lshr_b32 s40, s40, 5\ns_mul_i32 s41, s40, 3\ns_sub_u32 s41, s3, s41')
    A('s_waitcnt lgkmcnt(0)')
    A.srd(20, 8, WS_USED)
    A(f's_cmp_ge_u32 s3, 3\ns_cbranch_scc1 {name}_dma')
    A(f'v_lshlrev_b32 v4, 6, v9\ns_mul_i32 s16, s12, 6144\ns_add_u32 s16, s16, {ST}\nv_cmp_gt_u32 vcc, 96, v9\ns_and_saveexec_b64 s[18:19], vcc\ns_cbranch_execz {name}_t1')
    for i in range(4): A(f'buffer_load_dwordx4 {vr(16+4*i,4)}, v4, s[20:23], s16 offen offset:{16*i}')
    A.label(f'{name}_t1')
    A(f's_andn2_b64 exec, s[18:19], exec\ns_cbranch_execz {name}_t2')
    A(f'v_lshlrev_b32 v4, 2, v9\ns_mul_i32 s16, s13, 384\ns_add_u32 s16, s16, {CS-384}\nbuffer_load_dword v32, v4, s[20:23], s16 offen')
    A.label(f'{name}_t2'); A('s_mov_b64 exec, -1')
    A.label(f'{name}_dma')
    for c in range(4):
        for i in range(4):
            A(f's_add_u32 m0, s{32+i}, {3072*c}\ns_add_u32 s16, s{36+i}, {3072*c}\nbuffer_load_dwordx4 v1, s[20:23], s16 offen lds')
    A(f's_cmp_ge_u32 s3, 3\ns_cbranch_scc1 {name}_go')
    A('s_waitcnt vmcnt(16)')
    for i in range(1, 8): A(f'v_pk_add_f32 v[16:17], v[16:17], {vr(16+2*i,2)}')
    A(f'v_mul_f32 v16, {hx(f2u(1/384))}, v16\nv_mul_f32 v17, {hx(f2u(1/384))}, v17\nv_fma_f32 v17, -v16, v16, v17\nv_max_f32 v17, 0, v17\nv_add_f32 v17, {hx(f2u(1e-5))}, v17\nv_rsq_f32 v17, v17')
    A(f'v_cmp_gt_u32 vcc, 96, v9\nv_lshlrev_b32 v4, 3, v9\ns_nop 0\nv_cndmask_b32 v16, v32, v16, vcc\nv_cndmask_b32 v17, 1.0, v17, vcc\nds_write_b64 v4, v[16:17] offset:{TAB-131072}'.replace('v_lshlrev_b32 v4, 3, v9', 'v_lshlrev_b32 v4, 3, v9\nv_add_u32 v4, 0x20000, v4'))
    A('s_waitcnt lgkmcnt(0)')
    A.label(f'{name}_go')
    A('s_lshl_b32 s16, s41, 1\ns_add_u32 s16, s16, 6\ns_lshl_b32 s17, s40, 1')
    if q: A('s_cmp_ge_u32 s13, 8\ns_cselect_b32 s18, s17, s16\ns_cselect_b32 s17, s16, s17\ns_mov_b32 s16, s18')
    A('s_mul_i32 s18, s16, 12288\ns_mul_i32 s19, s17, 12288\nv_add_u32 v5, s18, v1\nv_add_u32 v6, s19, v1')
    A(f's_lshl_b32 s18, s16, 7\ns_add_u32 s18, s18, {TAB}\nv_lshl_add_u32 v7, v2, 5, s18\ns_lshl_b32 s19, s17, 7\ns_add_u32 s19, s19, {TAB}\nv_lshl_add_u32 v8, v3, 3, s19')
    ACC = 16; FR = 32
    for c in range(4):
        A(f's_waitcnt vmcnt({4*(3-c)})\ns_barrier')
        for jj in range(3):
            j = 3*c+jj
            for p in range(2): A(f'ds_read_b128 {vr(FR+jj*16+4*p,4)}, v5 offset:{p*12288+j*1024}\nds_read_b128 {vr(FR+jj*16+8+4*p,4)}, v6 offset:{p*12288+j*1024}')
        if c == 3:
            for p in range(2): A(f'ds_read_b128 {vr(80+8*p,4)}, v7 offset:{128*p}\nds_read_b128 {vr(84+8*p,4)}, v7 offset:{128*p+16}\nds_read_b64 {vr(96+2*p,2)}, v8 offset:{128*p}')
        for jj in range(3):
            A(f's_waitcnt lgkmcnt({4*(2-jj) + (6 if c == 3 else 0)})')
            for qq in range(2):
                for p in range(2): A(mfma32(ACC+(qq*2+p)*4, FR+jj*16+4*p, FR+jj*16+8+4*qq, '0' if 3*c+jj == 0 else None))
    if q:
        A('s_and_b32 s16, s12, 12\ns_and_b32 s17, s13, 3\ns_add_u32 s16, s16, s17\ns_mul_i32 s16, s16, 72\ns_and_b32 s17, s12, 3\ns_mul_i32 s17, s17, 18\ns_add_u32 s16, s16, s17\ns_mul_i32 s17, s40, 6\ns_add_u32 s16, s16, s17')
        A(f's_lshl_b32 s17, s41, 1\ns_cmp_ge_u32 s13, 8\ns_cselect_b32 s17, s17, s41\ns_cselect_b32 s18, 1, 3\ns_lshl_b32 s18, s18, 10\ns_add_u32 s16, s16, s17\ns_lshl_b32 s16, s16, 10')
        A(f's_lshr_b32 s17, s13, 2\ns_mul_i32 s17, s17, {KF-QF}\ns_add_u32 s16, s16, s17\ns_add_u32 s16, s16, {QF}\ns_add_u32 s17, s16, s18')
        assert VF-KF == KF-QF
    else:
        A(f's_mul_i32 s16, s12, 6\ns_lshl_b32 s17, s40, 1\ns_add_u32 s16, s16, s17\ns_mul_i32 s16, s16, 48\ns_mul_i32 s17, s13, 3\ns_add_u32 s16, s16, s17\ns_add_u32 s16, s16, s41\ns_lshl_b32 s16, s16, 10\ns_add_u32 s16, s16, {HID}\ns_add_u32 s17, s16, {48*KB}')
        c1 = -2*0.7978845608028654*1.4426950408889634
        A(f's_mov_b32 s24, {hx(f2u(c1*0.044715))}\ns_mov_b32 s25, s24\ns_mov_b32 s26, {hx(f2u(c1))}\ns_mov_b32 s27, s26\nv_mov_b32 v10, s26\nv_mov_b32 v11, s26')
    A('s_waitcnt lgkmcnt(0)\ns_nop 4')
    for qq in range(2):
        for p in range(2):
            for i in range(4):
                a = ACC+(qq*2+p)*4+i; t = 80+8*p+2*i
                A(f'v_fma_f32 v{a}, -v{t}, v{96+2*qq}, v{a}')
                if q: A(f'v_mul_f32 v{a}, v{a}, v{t+1}')
                A(f'v_mul_f32 v{a}, v{a}, v{97+2*qq}')
        if not q:
            for i in range(4):
                a = ACC+qq*8+2*i; t = FR+2*i
                A(f'v_pk_mul_f32 {vr(t,2)}, {vr(a,2)}, {vr(a,2)}\nv_pk_fma_f32 {vr(t,2)}, {vr(t,2)}, s[24:25], v[10:11]\nv_pk_mul_f32 {vr(t,2)}, {vr(t,2)}, {vr(a,2)}')
            for i in range(8): A(f'v_exp_f32 v{FR+i}, v{FR+i}')
            for i in range(8): A(f'v_add_f32 v{FR+i}, 1.0, v{FR+i}')
            for i in range(8): A(f'v_rcp_f32 v{FR+i}, v{FR+i}')
            for i in range(4): A(f'v_pk_mul_f32 {vr(ACC+qq*8+2*i,2)}, {vr(ACC+qq*8+2*i,2)}, {vr(FR+2*i,2)}')
        for i in range(4): A(f'v_cvt_pk_bf16_f32 v{48+4*qq+i}, v{ACC+qq*8+2*i}, v{ACC+qq*8+2*i+1}')
        A(f'buffer_store_dwordx4 {vr(48+4*qq,4)}, v1, s[20:23], s{16+qq} offen')
    A.label(f'{name}_end'); A('s_endpgm')
    return A.text(), 100, TAB+1536, NWG, 576
```

```python
from common import *
LOG2E = 1.4426950408889634
SC = 96 ** -0.5 * LOG2E
def gen_k1():
    A = Asm()
    NS = 7; RING = 24576
    A('s_cmp_ge_u32 s2, 231\ns_cbranch_scc1 k1_end')
    A('s_load_dwordx16 s[4:19], s[0:1], 0\ns_load_dwordx2 s[20:21], s[0:1], 72')
    A('v_lshrrev_b32 v1, 6, v0\nv_and_b32 v0, 63, v0\ns_nop 0\nv_readfirstlane_b32 s3, v1')
    A('v_lshrrev_b32 v2, 4, v0')
    A('v_bfe_u32 v3, v0, 2, 2')
    A('v_and_b32 v4, 1, v2\nv_lshlrev_b32 v4, 1, v4\nv_and_b32 v5, 3, v0\nv_xor_b32 v4, v4, v5\nv_lshlrev_b32 v4, 4, v4')
    A('v_lshrrev_b32 v6, 2, v0\nv_lshlrev_b32 v6, 6, v6\nv_and_b32 v7, 1, v2\nv_lshl_add_u32 v6, v7, 5, v6\nv_lshl_add_u32 v6, v5, 3, v6\nv_xor_b32 v7, 32, v6')
    A('v_lshlrev_b32 v8, 4, v0')
    A('s_waitcnt lgkmcnt(0)')
    A.srd(28, 20, WS_USED)
    A('s_cmp_ge_u32 s2, 192\ns_cbranch_scc1 k1_helper')
    A.srd(24, 4, 1536*768); A.srd(32, 6, 384*2304)
    A('s_and_b32 s36, s2, 7\ns_lshr_b32 s37, s36, 1\ns_and_b32 s36, s36, 1\ns_lshr_b32 s38, s2, 3\ns_lshl_b32 s38, s38, 1\ns_add_u32 s38, s38, s36\ns_lshl_b32 s38, s38, 3')
    A('v_lshrrev_b32 v9, 3, v0\ns_lshl_b32 s39, s3, 3\nv_add_u32 v9, s39, v9')
    A('v_and_b32 v10, 3, v9\nv_mul_u32_u24 v10, 384, v10\nv_lshrrev_b32 v11, 2, v9\nv_add3_u32 v10, v10, v11, s38\nv_mul_u32_u24 v10, 768, v10')
    A('v_and_b32 v11, 7, v0\nv_lshl_add_u32 v10, v11, 4, v10')
    for i in range(6): A(f'buffer_load_dwordx4 {vr(16+4*i,4)}, v10, s[24:27], 0 offen offset:{128*i}')
    A('v_lshl_add_u32 v12, v2, 3, v3\nv_mul_u32_u24 v12, 2304, v12\nv_add_u32 v12, v12, v4')
    A('s_mul_i32 s40, s37, 192\ns_lshl_b32 s41, s3, 6\ns_add_u32 s40, s40, s41')
    A(f's_mul_i32 s41, s3, {NS*6144}\ns_add_u32 s41, s41, {RING}')
    def dma(j):
        for m in range(3):
            for hh in range(2):
                A(f's_add_u32 m0, s41, {(j%NS)*6144 + m*2048 + hh*1024}\ns_add_u32 s42, s40, {j*73728 + hh*9216 + m*768}')
                A('buffer_load_dwordx4 v12, s[32:35], s42 offen lds')
    A('s_cmp_eq_u32 s3, 3\ns_cbranch_scc1 k1_ln3')
    for j in range(NS): dma(j)
    A(f's_waitcnt vmcnt({6*NS})\ns_branch k1_ln')
    A.label('k1_ln3'); A('s_waitcnt vmcnt(0)')
    A.label('k1_ln')
    for i in range(24):
        A(f'v_lshlrev_b32 v{40+2*i}, 16, v{16+i}\nv_and_b32 v{41+2*i}, 0xffff0000, v{16+i}')
    A('v_pk_add_f32 v[14:15], v[40:41], v[42:43]')
    for i in range(2, 24): A(f'v_pk_add_f32 v[14:15], v[14:15], {vr(40+2*i,2)}')
    A('v_add_f32 v14, v14, v15')
    def red8(x):
        A(f's_nop 1\nv_add_f32_dpp v{x}, v{x}, v{x} quad_perm:[1,0,3,2] row_mask:0xf bank_mask:0xf')
        A(f's_nop 1\nv_add_f32_dpp v{x}, v{x}, v{x} quad_perm:[2,3,0,1] row_mask:0xf bank_mask:0xf')
        A(f's_nop 1\nv_add_f32_dpp v{x}, v{x}, v{x} row_half_mirror row_mask:0xf bank_mask:0xf')
    red8(14)
    A(f'v_mul_f32 v14, {hx(f2u(-1.0/384))}, v14\nv_mov_b32 v15, v14')
    for i in range(24): A(f'v_pk_add_f32 {vr(40+2*i,2)}, {vr(40+2*i,2)}, v[14:15]')
    A('v_pk_mul_f32 v[14:15], v[40:41], v[40:41]')
    for i in range(1, 24): A(f'v_pk_fma_f32 v[14:15], {vr(40+2*i,2)}, {vr(40+2*i,2)}, v[14:15]')
    A('v_add_f32 v14, v14, v15')
    red8(14)
    A(f'v_mov_b32 v15, {hx(f2u(1e-5))}\nv_fmac_f32 v15, {hx(f2u(1.0/384))}, v14\nv_rsq_f32 v14, v15\ns_nop 0\nv_mov_b32 v15, v14')
    for i in range(24):
        A(f'v_pk_mul_f32 {vr(40+2*i,2)}, {vr(40+2*i,2)}, v[14:15]\nv_cvt_pk_bf16_f32 v{16+i}, v{40+2*i}, v{41+2*i}')
    A('v_lshrrev_b32 v13, 4, v9\nv_mul_u32_u24 v13, 12288, v13\nv_lshrrev_b32 v14, 2, v11\nv_lshl_add_u32 v13, v14, 10, v13')
    A('v_and_b32 v14, 3, v11\nv_lshl_add_u32 v13, v14, 8, v13\nv_and_b32 v14, 15, v9\nv_lshl_add_u32 v13, v14, 4, v13')
    for i in range(6): A(f'ds_write_b128 v13, {vr(16+4*i,4)} offset:{2048*i}')
    A('s_waitcnt lgkmcnt(0)\ns_barrier\ns_cmp_eq_u32 s3, 3\ns_cbranch_scc1 k1_end')
    XF = 16; ACC = 112; FB = 160
    for i in range(24): A(f'ds_read_b128 {vr(XF+4*i,4)}, v8 offset:{1024*i}')
    A('v_add_u32 v6, s41, v6\nv_add_u32 v7, s41, v7')
    def reads(j):
        for m in range(3):
            for c in range(2):
                for hh in range(2):
                    A(f'ds_read_b64_tr_b16 {vr(FB+(j&1)*24+(m*2+c)*4+hh*2,2)}, v{6+c} offset:{(j%NS)*6144+m*2048+hh*1024}')
    A(f's_waitcnt vmcnt({6*(NS-1)}) lgkmcnt(0)')
    reads(0); A('s_waitcnt lgkmcnt(0)'); dma(NS)
    for j in range(12):
        if j < 11:
            A(f's_waitcnt vmcnt({6*(min(11, j+NS)-(j+1))})'); reads(j+1)
        for tb in range(2):
            for m in range(3):
                for c in range(2):
                    d = ACC + (tb*6+m*2+c)*4; w = FB+(j&1)*24+(m*2+c)*4; x = XF+(tb*12+j)*4
                    A(mfma32(d, w, x, '0' if j == 0 else None) if m < 2 else mfma32(d, x, w, '0' if j == 0 else None))
        if j < 11:
            A('s_waitcnt lgkmcnt(0)')
            if j+1+NS < 12: dma(j+1+NS)
    A('s_nop 7')
    for tb in range(2):
        for i in range(12):
            A(f'v_cvt_pk_bf16_f32 v{16+tb*12+i}, v{ACC+tb*24+2*i}, v{ACC+tb*24+2*i+1}')
    A('v_add_u32 v9, s41, v8\ns_nop 1')
    for tb in range(2): A(mfma32(40+4*tb, 16+tb*12+4, 16+tb*12, '0'))
    A('s_nop 7')
    for tb in range(2): A(f'ds_write_b128 v9, {vr(40+4*tb,4)} offset:{1024*tb}')
    A(f'v_add_u32 v9, {RING}, v8\nv_add_u32 v10, {RING+NS*6144}, v8\nv_add_u32 v11, {RING+2*NS*6144}, v8')
    A('s_waitcnt lgkmcnt(0)\ns_barrier')
    for tb in range(2):
        for w in range(3): A(f'ds_read_b128 {vr(48+tb*12+4*w,4)}, v{9+w} offset:{1024*tb}')
    A(f'v_bfe_u32 v12, v0, 2, 2\nv_cmp_eq_u32 vcc, v12, v2\ns_mov_b32 s42, {hx(f2u(SC))}')
    A('v_and_b32 v13, 3, v0\nv_mul_u32_u24 v13, 0x48000, v13\nv_lshl_add_u32 v13, v2, 8, v13\nv_lshl_add_u32 v13, v12, 4, v13')
    A(f's_lshr_b32 s43, s38, 4\ns_mul_i32 s43, s43, 12\ns_mul_i32 s44, s37, 3\ns_add_u32 s43, s43, s44\ns_add_u32 s43, s43, s3\ns_lshl_b32 s43, s43, 10')
    A(f's_and_b32 s44, s38, 15\ns_lshl_b32 s44, s44, 4\ns_add_u32 s43, s43, s44\ns_add_u32 s43, s43, {OT}')
    A('s_waitcnt lgkmcnt(0)')
    for tb in range(2):
        b = 48+tb*12
        for i in range(4): A(f'v_add_f32 v{b+i}, v{b+i}, v{b+4+i}\nv_add_f32 v{b+i}, v{b+i}, v{b+8+i}')
        A(f'v_max3_f32 v{b+4}, v{b}, v{b+1}, v{b+2}\nv_max_f32 v{b+4}, v{b+4}, v{b+3}')
        for i in range(4): A(f'v_sub_f32 v{b+i}, v{b+i}, v{b+4}\nv_mul_f32 v{b+i}, s42, v{b+i}\nv_exp_f32 v{b+i}, v{b+i}')
        A(f's_nop 0\nv_add_f32 v{b+4}, v{b}, v{b+1}\nv_add_f32 v{b+5}, v{b+2}, v{b+3}\nv_add_f32 v{b+4}, v{b+4}, v{b+5}\nv_rcp_f32 v{b+4}, v{b+4}\ns_nop 0')
        A(f'v_cndmask_b32 v{b+4}, 0, v{b+4}, vcc')
        for i in range(4): A(f'v_mul_f32 v{b+i}, v{b+i}, v{b+4}')
        A(f'v_cvt_pk_bf16_f32 v{b+6}, v{b}, v{b+1}\nv_cvt_pk_bf16_f32 v{b+7}, v{b+2}, v{b+3}\ns_nop 1')
        for c in range(2):
            A(f'v_mfma_f32_16x16x16_bf16 {vr(80+tb*8+4*c,4)}, {vr(16+tb*12+8+2*c,2)}, {vr(b+6,2)}, 0')
    A('s_nop 7')
    for tb in range(2):
        for i in range(4): A(f'v_cvt_pk_bf16_f32 v{96+tb*4+i}, v{80+tb*8+2*i}, v{81+tb*8+2*i}')
        A(f'buffer_store_dwordx4 {vr(96+tb*4,4)}, v13, s[28:31], s43 offen offset:{64*tb}')
    A('s_endpgm')
    A.label('k1_helper')
    A('s_sub_u32 s36, s2, 192\ns_lshl_b32 s36, s36, 2\ns_add_u32 s36, s36, s3')
    cases = [(0, 36, 10, 2304, 384, WF_QS, 12, CS_QS), (36, 84, 14, 3072, 384, WF_1, 12, CS_1), (84, 96, 8, 768, 384, WF_PT, 12, 0),
             (96, 108, 12, 768, 384, WF_PS, 12, 0)] + [(108+12*q, 120+12*q, 16, 768, 1536, WF_2 + q*12*KB, 48, 0) for q in range(4)]
    for ci, (lo, hi, p, ld, rows, dst, ks, cs) in enumerate(cases):
        if ci < len(cases)-1: A(f's_cmp_ge_u32 s36, {hi}\ns_cbranch_scc1 k1_h{ci+1}')
        A.srd(32, p, ld*rows)
        k0 = (ci-4)*384 if ci >= 4 else 0
        A(f's_mov_b32 s37, {ld}\ns_sub_u32 s38, s36, {lo}\ns_mov_b32 s39, {k0*ld}\ns_mov_b32 s40, {dst}\ns_mov_b32 s41, {ks*KB}\ns_mov_b32 s42, {cs}')
        if ci < len(cases)-1:
            A('s_branch k1_hgo'); A.label(f'k1_h{ci+1}')
    A.label('k1_hgo')
    A('v_lshrrev_b32 v12, 2, v0\nv_mul_lo_u32 v12, v12, s37\nv_add_u32 v12, v12, v4')
    A('s_lshl_b32 s43, s38, 6\ns_add_u32 s39, s39, s43\ns_lshl_b32 s43, s37, 4\ns_mul_i32 s44, s3, 24576\ns_mov_b32 m0, s44')
    for i in range(24):
        A('s_nop 0\nbuffer_load_dwordx4 v12, s[32:35], s39 offen lds\ns_add_u32 s39, s39, s43\ns_add_u32 m0, m0, 1024')
    A('v_add_u32 v6, s44, v6\nv_add_u32 v7, s44, v7')
    A('s_lshl_b32 s45, s38, 1\ns_mul_i32 s45, s45, s41\ns_add_u32 s45, s45, s40\ns_add_u32 s46, s45, s41')
    for i in range(4): A(f'v_mov_b32 v{120+i}, 0x3f803f80')
    A('s_waitcnt vmcnt(0)')
    for j in range(12):
        for c in range(2):
            for hh in range(2): A(f'ds_read_b64_tr_b16 {vr(16+(j*2+c)*4+hh*2,2)}, v{6+c} offset:{j*2048+hh*1024}')
        if j % 3 == 2: A('s_waitcnt lgkmcnt(0)')
    for j in range(12):
        for c in range(2):
            A(f'buffer_store_dwordx4 {vr(16+(j*2+c)*4,4)}, v8, s[28:31], s{45+c} offen offset:{(j%4)*1024}')
            A(mfma32(112+4*c, 16+(j*2+c)*4, 120, '0' if j == 0 else None))
        if j % 4 == 3: A('s_add_u32 s45, s45, 4096\ns_add_u32 s46, s46, 4096')
    A('s_cmp_eq_u32 s42, 0\ns_cbranch_scc1 k1_end')
    A('s_lshl_b32 s43, s38, 7\ns_add_u32 s42, s42, s43\nv_lshlrev_b32 v9, 4, v2\nv_and_b32 v10, 15, v0\nv_cmp_eq_u32 vcc, 0, v10\ns_nop 7\ns_and_saveexec_b64 s[48:49], vcc')
    for c in range(2): A(f'buffer_store_dwordx4 {vr(112+4*c,4)}, v9, s[28:31], s42 offen offset:{64*c}')
    A.label('k1_end'); A('s_endpgm')
    return A.text(), 208, 153600, 231, 256
```

```python
from common import *
from k1 import SC
def gen_k4():
    A = Asm()
    A('s_cmp_ge_u32 s2, 192\ns_cbranch_scc1 k4_end')
    A('s_load_dwordx2 s[8:9], s[0:1], 72')
    A('v_lshrrev_b32 v1, 6, v0\nv_and_b32 v0, 63, v0\ns_and_b32 s10, s2, 7\nv_readfirstlane_b32 s3, v1')
    A('s_lshr_b32 s11, s2, 3\ns_lshl_b32 s12, s10, 1\ns_and_b32 s13, s11, 1\ns_add_u32 s12, s12, s13\ns_lshr_b32 s13, s11, 1')
    A('v_lshlrev_b32 v1, 4, v0\nv_lshlrev_b32 v2, 2, v0')
    A(f's_mul_i32 s14, s12, {72*KB}\ns_mul_i32 s15, s13, {6*KB}\ns_add_u32 s15, s15, s14\ns_add_u32 s15, s15, {QF}')
    A(f's_mul_i32 s16, s3, {18*KB}\ns_add_u32 s14, s14, s16\ns_add_u32 s16, s14, {KF}\ns_add_u32 s17, s14, {VF}')
    A('s_waitcnt lgkmcnt(0)')
    A.srd(20, 8, WS_USED)
    Q = 8; K = 32; V = 104; S = 176; P = 8; O = 32; L = 80; ONE = 224
    def ld(base, n, s):
        for i in range(n):
            A(f'buffer_load_dwordx4 {vr(base+4*i,4)}, v1, s[20:23], s{s} offen offset:{(i%4)*1024}')
            if i % 4 == 3: A(f's_add_u32 s{s}, s{s}, 4096')
    ld(Q, 6, 15); ld(K, 18, 16); ld(V, 18, 17)
    for i in range(4): A(f'v_mov_b32 v{ONE+i}, 0x3f803f80')
    A(f's_mov_b32 s24, {hx(f2u(SC))}\ns_lshl_b32 s25, s3, 9\nv_add_u32 v3, s25, v2')
    for kt in range(6):
        A(f's_waitcnt vmcnt({18+3*(5-kt)})')
        for j in range(3):
            for a in range(2): A(mfma32(S+(a*6+kt)*4, K+(kt*3+j)*4, Q+(a*3+j)*4, '0' if j == 0 else None))
    A('s_nop 7')
    for a in range(2):
        b = S+a*24
        A(f'v_max3_f32 v{4+a}, v{b}, v{b+1}, v{b+2}')
        for i in range(3, 23, 2): A(f'v_max3_f32 v{4+a}, v{4+a}, v{b+i}, v{b+i+1}')
        A(f'v_max_f32 v{4+a}, v{4+a}, v{b+23}')
        red_g(A, 4+a, 6, 'v_max_f32')
        A(f'ds_write_b32 v3, v{4+a} offset:{256*a}')
    A('s_waitcnt lgkmcnt(0)\ns_barrier')
    for a in range(2):
        for w in range(4): A(f'ds_read_b32 v{K+4*a+w}, v2 offset:{512*w+256*a}')
    A('s_waitcnt lgkmcnt(0)')
    for a in range(2):
        A(f'v_max3_f32 v{4+a}, v{K+4*a}, v{K+4*a+1}, v{K+4*a+2}\nv_max_f32 v{4+a}, v{4+a}, v{K+4*a+3}\nv_mul_f32 v{4+a}, s24, v{4+a}')
    for a in range(2):
        b = S+a*24
        for i in range(24): A(f'v_fma_f32 v{b+i}, v{b+i}, s24, -v{4+a}')
        for i in range(24): A(f'v_exp_f32 v{b+i}, v{b+i}')
        A('s_nop 0')
        for i in range(12): A(f'v_cvt_pk_bf16_f32 v{P+a*12+i}, v{b+2*i}, v{b+2*i+1}')
    A('s_nop 1')
    for kp in range(3):
        A(f's_waitcnt vmcnt({6*(2-kp)})')
        for a in range(2):
            for dt in range(6): A(mfma32(O+(a*6+dt)*4, V+(kp*6+dt)*4, P+(a*3+kp)*4, '0' if kp == 0 else None))
            A(mfma32(L+4*a, ONE, P+(a*3+kp)*4, '0' if kp == 0 else None))
    A('s_mul_i32 s25, s3, 12288\ns_add_u32 s25, s25, 4096\nv_add_u32 v6, s25, v1\ns_mul_i32 s25, s3, 3072\ns_add_u32 s25, s25, 4096\nv_add_u32 v7, s25, v1')
    A('s_lshr_b32 s26, s3, 1\ns_lshl_b32 s25, s26, 8\nv_add_u32 v2, s25, v2\ns_nop 2')
    for i in range(12): A(f'ds_write_b128 v6, {vr(O+4*i,4)} offset:{1024*i}')
    for a in range(2): A(f'ds_write_b32 v3, v{L+4*a} offset:{2048+256*a}')
    A('s_lshr_b32 s27, s12, 2\ns_mul_i32 s27, s27, 24\ns_lshl_b32 s28, s13, 1\ns_add_u32 s27, s27, s28\ns_add_u32 s27, s27, s26\ns_mul_i32 s27, s27, 12\ns_and_b32 s28, s12, 3\ns_mul_i32 s28, s28, 3\ns_add_u32 s27, s27, s28\ns_lshl_b32 s27, s27, 10')
    A(f's_add_u32 s27, s27, {OS}\ns_and_b32 s28, s3, 1\ns_cmp_eq_u32 s28, 1')
    A('s_cselect_b32 s30, 1032, 0\ns_cselect_b32 s31, 2048, 8\ns_cselect_b32 s32, 1032, 0\ns_add_u32 s32, s32, 1024\ns_add_u32 s30, s30, s27\ns_add_u32 s31, s31, s27\ns_add_u32 s32, s32, s27')
    A('s_waitcnt lgkmcnt(0)\ns_barrier')
    for w in range(4): A(f'ds_read_b32 v{8+w}, v2 offset:{2048+512*w}')
    for w in range(4):
        for i in range(3): A(f'ds_read_b128 {vr(V+(w*3+i)*4,4)}, v7 offset:{w*12288+i*1024}')
    A('s_waitcnt lgkmcnt(12)\nv_add_f32 v8, v8, v9\nv_add_f32 v10, v10, v11\nv_add_f32 v8, v8, v10\nv_rcp_f32 v8, v8\ns_nop 0\nv_mov_b32 v9, v8\ns_waitcnt lgkmcnt(0)')
    for i in range(6):
        A(f'v_pk_add_f32 {vr(V+2*i,2)}, {vr(V+2*i,2)}, {vr(V+12+2*i,2)}\nv_pk_add_f32 {vr(V+24+2*i,2)}, {vr(V+24+2*i,2)}, {vr(V+36+2*i,2)}')
    for i in range(6):
        A(f'v_pk_add_f32 {vr(V+2*i,2)}, {vr(V+2*i,2)}, {vr(V+24+2*i,2)}\nv_pk_mul_f32 {vr(V+2*i,2)}, {vr(V+2*i,2)}, v[8:9]\nv_cvt_pk_bf16_f32 v{12+i}, v{V+2*i}, v{V+2*i+1}')
    for i in range(3): A(f'buffer_store_dwordx2 {vr(12+2*i,2)}, v1, s[20:23], s{30+i} offen')
    A.label('k4_end'); A('s_endpgm')
    return A.text(), 228, 4096+4*12288, 192, 256
```

```python
import sys
from common import *
from k1 import gen_k1
from g48 import gen_g48
from g96 import gen_g96
from k4 import gen_k4
ks = [('k1', gen_k1()), ('k2', gen_g48('k2', 12, OT, WF_PT, 'x', X1, ST1)), ('k3', gen_g96('k3', 'qkv')), ('k4', gen_k4()),
      ('k5', gen_g48('k5', 12, OS, WF_PS, X1, X2, ST2)), ('k6', gen_g96('k6', 'mlp')), ('k7', gen_g48('k7', 48, HID, WF_2, X2, 'out', None))]
nempty = int(sys.argv[2]) if len(sys.argv) > 2 else 0
for i in range(nempty): ks.append((f'e{i}', ('    s_endpgm\n', 32, 0, 256, 256)))
hdr = []
for l in open('standalone__video_videomae__vision.s.ref').read().split('\n'):
    if l.startswith('; @launch'): break
    hdr.append(l)
out = '\n'.join(hdr) + '\n'
for n, (t, vg, lds, g, b) in ks: out += f'; @launch kernel={n}_kernel grid=({g},1,1) block=({b},1,1) lds={lds}\n'
out += '.amdgcn_target "amdgcn-amd-amdhsa--gfx950"\n.text\n'
for n, (t, vg, lds, g, b) in ks: out += f'.globl {n}_kernel\n.p2align 8\n.type {n}_kernel,@function\n{n}_kernel:\n' + t
out += '.section .rodata,"a"\n'
for n, (t, vg, lds, g, b) in ks: out += kdesc(n + '_kernel', vg)
open(sys.argv[1], 'w').write(out)
```

```python
import struct
KB = 1024
off = 0
def alloc(n):
    global off
    o = off; off += (n + 4095) // 4096 * 4096
    return o
DUM1 = alloc(4096); WF_PT = alloc(288*KB); WF_QS = alloc(864*KB); WF_PS = alloc(288*KB); WF_1 = alloc(1152*KB); DUM2 = alloc(4096); WF_2 = alloc(1152*KB)
CS_QS = alloc(1152*4); CS_1 = alloc(1536*4)
OT = alloc(1152*KB); X1 = alloc(1152*KB); ST1 = alloc(96*KB)
QF = alloc(1152*KB); KF = alloc(1152*KB); VF = alloc(1152*KB)
OS = alloc(1152*KB); X2 = alloc(1152*KB); ST2 = alloc(96*KB)
HID = alloc(4608*KB)
FL = alloc(72*KB); FO = FL+16*KB; F3 = FL+32*KB; HL = FL+64*KB
def wmap(d, t): return f's_and_b32 s{t}, s{d}, 7\ns_lshr_b32 s{d}, s{d}, 3\ns_lshl_b32 s{d}, s{d}, 5\ns_add_u32 s{d}, s{d}, s{t}\ns_lshl_b32 s{d}, s{d}, 2'
STAMP = alloc(8*256*128)
WS_USED = off
import os
STAMPS = int(os.environ.get('STAMPS', '0'))
def f2u(x): return struct.unpack('<I', struct.pack('<f', x))[0]
def hx(x): return '0x%x' % (x & 0xffffffff)

class Asm:
    def __init__(s): s.l = []
    def __call__(s, t):
        for ln in t.strip('\n').split('\n'): s.l.append('    ' + ln.strip())
    def label(s, n): s.l.append(n + ':')
    def srd(s, d, p, nbytes):
        s(f's_mov_b32 s{d}, s{p}\ns_and_b32 s{d+1}, s{p+1}, 0xffff\ns_mov_b32 s{d+2}, {hx(nbytes)}\ns_mov_b32 s{d+3}, 0x20000')
    def stamp(s, i):
        if STAMPS: s(f's_memrealtime s[{64+2*i}:{65+2*i}]\ns_waitcnt lgkmcnt(0)')
    def end(s, kid, srd, lbl):
        if STAMPS:
            s(f's_waitcnt vmcnt(0)'); s.stamp(7)
            s(f's_cmp_lg_u32 s3, 0\ns_cbranch_scc1 {lbl}\ns_mov_b64 exec, 1\ns_lshl_b32 s80, s2, 6\ns_add_u32 s80, s80, {STAMP+kid*256*64}\nv_mov_b32 v0, 0')
            for i in range(8): s(f'v_mov_b32 v{8+i}, s{64+2*i}')
            s(f'buffer_store_dwordx4 v[8:11], v0, s[{srd}:{srd+3}], s80 offen\nbuffer_store_dwordx4 v[12:15], v0, s[{srd}:{srd+3}], s80 offen offset:16')
    def text(s): return '\n'.join(s.l) + '\n'
def vr(b, n): return f'v[{b}:{b+n-1}]'
def R4(x): return x if isinstance(x, str) else vr(x, 4)
def ar(b, n=4): return f'a[{b}:{b+n-1}]'
def mfma32(d, a, b, c=None):
    return f'v_mfma_f32_16x16x32_bf16 {R4(d)}, {R4(a)}, {R4(b)}, {R4(d) if c is None else c}'
def red_g(A, x, t, op):
    A(f'v_mov_b32 v{t}, v{x}\ns_nop 1\nv_permlane16_swap_b32 v{x}, v{t}\ns_nop 1\n{op} v{x}, v{x}, v{t}')
    A(f'v_mov_b32 v{t}, v{x}\ns_nop 1\nv_permlane32_swap_b32 v{x}, v{t}\ns_nop 1\n{op} v{x}, v{x}, v{t}')
def kdesc(name, vg, sg=96, acc=None):
    acc = acc or (vg + 3) // 4 * 4
    return f'''.p2align 6
.amdhsa_kernel {name}
  .amdhsa_next_free_vgpr {vg}
  .amdhsa_next_free_sgpr {sg}
  .amdhsa_accum_offset {acc}
  .amdhsa_group_segment_fixed_size 0
  .amdhsa_kernarg_size 80
  .amdhsa_user_sgpr_count 2
  .amdhsa_user_sgpr_kernarg_segment_ptr 1
  .amdhsa_system_sgpr_workgroup_id_x 1
.end_amdhsa_kernel
'''
```

```python
from common import *
def gen_g48(name, KS, A_off, W_off, res, dst, st):
    A = Asm(); KW = KS // 3; RS = min(KW, 8)
    A(f's_cmp_ge_u32 s2, 256\ns_cbranch_scc1 {name}_end')
    A.stamp(0)
    A('s_load_dwordx2 s[4:5], s[0:1], 0\ns_load_dwordx2 s[6:7], s[0:1], 56\ns_load_dwordx2 s[8:9], s[0:1], 72')
    A('v_lshrrev_b32 v1, 6, v0\nv_and_b32 v0, 63, v0\ns_and_b32 s10, s2, 7\nv_readfirstlane_b32 s3, v1')
    A('s_lshr_b32 s11, s2, 3\ns_lshr_b32 s12, s10, 1\ns_lshl_b32 s12, s12, 3\ns_and_b32 s13, s11, 7\ns_add_u32 s12, s12, s13')
    A('s_and_b32 s13, s10, 1\ns_lshl_b32 s13, s13, 2\ns_lshr_b32 s11, s11, 3\ns_add_u32 s13, s13, s11')
    A('v_lshlrev_b32 v1, 4, v0\nv_lshrrev_b32 v2, 4, v0\nv_and_b32 v3, 15, v0')
    A('s_mul_i32 s12, s12, 3\ns_mul_i32 s14, s13, 3')
    A(f's_mul_i32 s15, s3, {KW*KB}')
    A('s_mov_b32 s16, s3\ns_add_u32 s17, s3, 1\ns_cmp_ge_u32 s17, 3\ns_cselect_b32 s17, 0, s17\ns_add_u32 s18, s17, 1\ns_cmp_ge_u32 s18, 3\ns_cselect_b32 s18, 0, s18')
    for a in range(3):
        A(f's_add_u32 s{32+a}, s12, s{16+a}\ns_mul_i32 s{32+a}, s{32+a}, {KS*KB}\ns_add_u32 s{32+a}, s{32+a}, s15\ns_add_u32 s{32+a}, s{32+a}, {A_off}')
        A(f's_add_u32 s{35+a}, s14, {a}\ns_mul_i32 s{35+a}, s{35+a}, {KS*KB}\ns_add_u32 s{35+a}, s{35+a}, s15\ns_add_u32 s{35+a}, s{35+a}, {W_off}')
    A('s_add_u32 s19, s12, s3')
    for b in range(3):
        A(f's_add_u32 s42, s14, {b}\ns_lshr_b32 s43, s42, 1\ns_mul_i32 s{38+b}, s19, 12\ns_add_u32 s{38+b}, s{38+b}, s43\ns_lshl_b32 s{38+b}, s{38+b}, 10\ns_and_b32 s42, s42, 1\ns_lshl_b32 s42, s42, 3\ns_add_u32 s{38+b}, s{38+b}, s42')
    A('v_mul_u32_u24 v4, 768, v3\nv_lshl_add_u32 v4, v2, 3, v4\ns_mul_i32 s41, s19, 12288\ns_lshl_b32 s42, s14, 5\ns_add_u32 s41, s41, s42')
    A('s_waitcnt lgkmcnt(0)')
    A.stamp(1)
    A.srd(20, 8, WS_USED)
    if res == 'x': A.srd(24, 4, 1536*768)
    if dst == 'out': A.srd(28, 6, 1536*768)
    RES = 8; ACC = 16; FR = 52
    for b in range(3):
        if res == 'x': A(f'buffer_load_dwordx2 {vr(RES+2*b,2)}, v4, s[24:27], s41 offen offset:{32*b}')
        else: A(f's_add_u32 s42, s{38+b}, {res}\nbuffer_load_dwordx2 {vr(RES+2*b,2)}, v1, s[20:23], s42 offen')
    def loads(j):
        for i in range(6): A(f'buffer_load_dwordx4 {vr(FR+(j%RS)*24+4*i,4)}, v1, s[20:23], s{32+i} offen offset:{(j%4)*1024}')
        if j % 4 == 3 and j+1 < KW:
            for i in range(6): A(f's_add_u32 s{32+i}, s{32+i}, 4096')
    for j in range(RS): loads(j)
    A.stamp(2)
    for j in range(KW):
        A(f's_waitcnt vmcnt({6*(min(KW, j+RS)-j-1)})')
        if j == 0: A.stamp(3)
        f = FR+(j%RS)*24
        for a in range(3):
            for b in range(3): A(mfma32(ACC+(a*3+b)*4, f+12+4*b, f+4*a, '0' if j == 0 else None))
        if j+RS < KW: loads(j+RS)
    A.stamp(4)
    A('s_mul_i32 s17, s17, 6144\ns_mul_i32 s18, s18, 6144\ns_add_u32 s18, s18, 3072\ns_mul_i32 s16, s16, 6144')
    A('v_add_u32 v5, s17, v1\nv_add_u32 v6, s18, v1\nv_add_u32 v7, s16, v1\ns_nop 4')
    for a in (1, 2):
        for b in range(3): A(f'ds_write_b128 v{4+a}, {vr(ACC+(a*3+b)*4,4)} offset:{1024*b}')
    A('s_waitcnt lgkmcnt(0)\ns_barrier')
    A.stamp(5)
    for i in range(6): A(f'ds_read_b128 {vr(FR+4*i,4)}, v7 offset:{1024*i}')
    T = FR+24
    for b in range(3):
        for i in range(2): A(f'v_lshlrev_b32 v{T+4*b+2*i}, 16, v{RES+2*b+i}\nv_and_b32 v{T+4*b+2*i+1}, 0xffff0000, v{RES+2*b+i}')
    A('s_waitcnt lgkmcnt(0)')
    for i in range(6):
        A(f'v_pk_add_f32 {vr(ACC+2*i,2)}, {vr(ACC+2*i,2)}, {vr(FR+2*i,2)}\nv_pk_add_f32 {vr(T+2*i,2)}, {vr(T+2*i,2)}, {vr(FR+12+2*i,2)}')
    for i in range(6):
        A(f'v_pk_add_f32 {vr(ACC+2*i,2)}, {vr(ACC+2*i,2)}, {vr(T+2*i,2)}\nv_cvt_pk_bf16_f32 v{RES+i}, v{ACC+2*i}, v{ACC+2*i+1}')
    for b in range(3):
        if dst == 'out': A(f'buffer_store_dwordx2 {vr(RES+2*b,2)}, v4, s[28:31], s41 offen offset:{32*b}')
        else: A(f's_add_u32 s42, s{38+b}, {dst}\nbuffer_store_dwordx2 {vr(RES+2*b,2)}, v1, s[20:23], s42 offen')
    if st is not None:
        for i in range(6): A(f'v_lshlrev_b32 v{ACC+2*i}, 16, v{RES+i}\nv_and_b32 v{ACC+2*i+1}, 0xffff0000, v{RES+i}')
        A(f'v_pk_add_f32 {vr(T,2)}, {vr(ACC,2)}, {vr(ACC+2,2)}\nv_pk_mul_f32 {vr(T+2,2)}, {vr(ACC,2)}, {vr(ACC,2)}')
        for i in range(2, 6): A(f'v_pk_add_f32 {vr(T,2)}, {vr(T,2)}, {vr(ACC+2*i,2)}')
        for i in range(1, 6): A(f'v_pk_fma_f32 {vr(T+2,2)}, {vr(ACC+2*i,2)}, {vr(ACC+2*i,2)}, {vr(T+2,2)}')
        A(f'v_add_f32 v{T}, v{T}, v{T+1}\nv_add_f32 v{T+1}, v{T+2}, v{T+3}')
        red_g(A, T, T+4, 'v_add_f32'); red_g(A, T+1, T+4, 'v_add_f32')
        A(f'v_lshlrev_b32 v5, 6, v0\ns_lshl_b32 s42, s19, 10\ns_lshl_b32 s43, s13, 3\ns_add_u32 s42, s42, s43\ns_add_u32 s42, s42, {st}')
        A(f's_mov_b64 exec, 0xffff\nbuffer_store_dwordx2 {vr(T,2)}, v5, s[20:23], s42 offen')
    A.end(int(name[1])-1, 20, f'{name}_end')
    A.label(f'{name}_end'); A('s_endpgm')
    return A.text(), max(FR+RS*24, T+12), 18432, 256, 192
```

```python
from common import *
def gen_g96(name, mode):
    A = Asm(); q = mode == 'qkv'
    NWG = 192 if q else 256; CPX = 3 if q else 4
    A_off, W_off, ST, CS = (X1, WF_QS, ST1, CS_QS) if q else (X2, WF_1, ST2, CS_1)
    TAB = 147456
    A(f's_cmp_ge_u32 s2, {NWG}\ns_cbranch_scc1 {name}_end')
    A.stamp(0)
    A('s_load_dwordx2 s[8:9], s[0:1], 72')
    A('v_mov_b32 v9, v0\nv_lshrrev_b32 v1, 6, v0\nv_and_b32 v0, 63, v0\ns_and_b32 s10, s2, 7\nv_readfirstlane_b32 s3, v1')
    A('s_lshr_b32 s11, s2, 3\ns_and_b32 s12, s10, 1\ns_lshl_b32 s12, s12, 3\ns_and_b32 s13, s11, 7\ns_add_u32 s12, s12, s13')
    A(f's_lshr_b32 s13, s10, 1\ns_mul_i32 s13, s13, {CPX}\ns_lshr_b32 s11, s11, 3\ns_add_u32 s13, s13, s11')
    A('v_lshlrev_b32 v1, 4, v0\nv_lshrrev_b32 v2, 4, v0\nv_and_b32 v3, 15, v0')
    A(f's_mul_i32 s14, s12, {72*KB}\ns_add_u32 s14, s14, {A_off}\ns_mul_i32 s15, s13, {72*KB}\ns_add_u32 s15, s15, {W_off - 72*KB}')
    for i in range(4):
        A(f's_add_u32 s16, s3, {9*i}\ns_mov_b32 s17, 0')
        for _ in range(2): A('s_cmp_ge_u32 s16, 12\ns_cselect_b32 s18, 12, 0\ns_cselect_b32 s19, 1024, 0\ns_sub_u32 s16, s16, s18\ns_add_u32 s17, s17, s19')
        A(f's_mul_i32 s{32+i}, s16, 12288\ns_add_u32 s{32+i}, s{32+i}, s17\ns_cmp_ge_u32 s16, 6\ns_cselect_b32 s18, s15, s14\ns_add_u32 s{36+i}, s{32+i}, s18')
    A('s_mul_i32 s40, s3, 11\ns_lshr_b32 s40, s40, 5\ns_mul_i32 s41, s40, 3\ns_sub_u32 s41, s3, s41')
    A('s_waitcnt lgkmcnt(0)')
    A.stamp(1)
    A.srd(20, 8, WS_USED)
    A(f's_cmp_ge_u32 s3, 3\ns_cbranch_scc1 {name}_dma')
    A(f'v_lshlrev_b32 v4, 6, v9\ns_mul_i32 s16, s12, 6144\ns_add_u32 s16, s16, {ST}\nv_cmp_gt_u32 vcc, 96, v9\ns_and_saveexec_b64 s[18:19], vcc\ns_cbranch_execz {name}_t1')
    for i in range(4): A(f'buffer_load_dwordx4 {vr(16+4*i,4)}, v4, s[20:23], s16 offen offset:{16*i}')
    A.label(f'{name}_t1')
    A(f's_andn2_b64 exec, s[18:19], exec\ns_cbranch_execz {name}_t2')
    A(f'v_lshlrev_b32 v4, 2, v9\ns_mul_i32 s16, s13, 384\ns_add_u32 s16, s16, {CS-384}\nbuffer_load_dword v32, v4, s[20:23], s16 offen')
    A.label(f'{name}_t2'); A('s_mov_b64 exec, -1')
    A.label(f'{name}_dma')
    for c in range(4):
        for i in range(4):
            A(f's_add_u32 m0, s{32+i}, {3072*c}\ns_add_u32 s16, s{36+i}, {3072*c}\nbuffer_load_dwordx4 v1, s[20:23], s16 offen lds')
    A.stamp(2)
    A(f's_cmp_ge_u32 s3, 3\ns_cbranch_scc1 {name}_go')
    A('s_waitcnt vmcnt(16)')
    for i in range(1, 8): A(f'v_pk_add_f32 v[16:17], v[16:17], {vr(16+2*i,2)}')
    A(f'v_mul_f32 v16, {hx(f2u(1/384))}, v16\nv_mul_f32 v17, {hx(f2u(1/384))}, v17\nv_fma_f32 v17, -v16, v16, v17\nv_max_f32 v17, 0, v17\nv_add_f32 v17, {hx(f2u(1e-5))}, v17\nv_rsq_f32 v17, v17')
    A(f'v_cmp_gt_u32 vcc, 96, v9\nv_lshlrev_b32 v4, 3, v9\ns_nop 0\nv_cndmask_b32 v16, v32, v16, vcc\nv_cndmask_b32 v17, 1.0, v17, vcc\nds_write_b64 v4, v[16:17] offset:{TAB-131072}'.replace('v_lshlrev_b32 v4, 3, v9', 'v_lshlrev_b32 v4, 3, v9\nv_add_u32 v4, 0x20000, v4'))
    A('s_waitcnt lgkmcnt(0)')
    A.label(f'{name}_go')
    A('s_lshl_b32 s16, s41, 1\ns_add_u32 s16, s16, 6\ns_lshl_b32 s17, s40, 1')
    if q: A('s_cmp_ge_u32 s13, 8\ns_cselect_b32 s18, s17, s16\ns_cselect_b32 s17, s16, s17\ns_mov_b32 s16, s18')
    A('s_mul_i32 s18, s16, 12288\ns_mul_i32 s19, s17, 12288\nv_add_u32 v5, s18, v1\nv_add_u32 v6, s19, v1')
    A(f's_lshl_b32 s18, s16, 7\ns_add_u32 s18, s18, {TAB}\nv_lshl_add_u32 v7, v2, 5, s18\ns_lshl_b32 s19, s17, 7\ns_add_u32 s19, s19, {TAB}\nv_lshl_add_u32 v8, v3, 3, s19')
    ACC = 16; FR = 32
    for c in range(4):
        A(f's_waitcnt vmcnt({4*(3-c)})\ns_barrier')
        if c == 0: A.stamp(3)
        if c == 3: A.stamp(4)
        for jj in range(3):
            j = 3*c+jj
            for p in range(2): A(f'ds_read_b128 {vr(FR+jj*16+4*p,4)}, v5 offset:{p*12288+j*1024}\nds_read_b128 {vr(FR+jj*16+8+4*p,4)}, v6 offset:{p*12288+j*1024}')
        if c == 3:
            for p in range(2): A(f'ds_read_b128 {vr(80+8*p,4)}, v7 offset:{128*p}\nds_read_b128 {vr(84+8*p,4)}, v7 offset:{128*p+16}\nds_read_b64 {vr(96+2*p,2)}, v8 offset:{128*p}')
        for jj in range(3):
            A(f's_waitcnt lgkmcnt({4*(2-jj) + (6 if c == 3 else 0)})')
            for qq in range(2):
                for p in range(2): A(mfma32(ACC+(qq*2+p)*4, FR+jj*16+4*p, FR+jj*16+8+4*qq, '0' if 3*c+jj == 0 else None))
    A.stamp(5)
    if q:
        A('s_and_b32 s16, s12, 12\ns_and_b32 s17, s13, 3\ns_add_u32 s16, s16, s17\ns_mul_i32 s16, s16, 72\ns_and_b32 s17, s12, 3\ns_mul_i32 s17, s17, 18\ns_add_u32 s16, s16, s17\ns_mul_i32 s17, s40, 6\ns_add_u32 s16, s16, s17')
        A(f's_lshl_b32 s17, s41, 1\ns_cmp_ge_u32 s13, 8\ns_cselect_b32 s17, s17, s41\ns_cselect_b32 s18, 1, 3\ns_lshl_b32 s18, s18, 10\ns_add_u32 s16, s16, s17\ns_lshl_b32 s16, s16, 10')
        A(f's_lshr_b32 s17, s13, 2\ns_mul_i32 s17, s17, {KF-QF}\ns_add_u32 s16, s16, s17\ns_add_u32 s16, s16, {QF}\ns_add_u32 s17, s16, s18')
        assert VF-KF == KF-QF
    else:
        A(f's_mul_i32 s16, s12, 6\ns_lshl_b32 s17, s40, 1\ns_add_u32 s16, s16, s17\ns_mul_i32 s16, s16, 48\ns_mul_i32 s17, s13, 3\ns_add_u32 s16, s16, s17\ns_add_u32 s16, s16, s41\ns_lshl_b32 s16, s16, 10\ns_add_u32 s16, s16, {HID}\ns_add_u32 s17, s16, {48*KB}')
        c1 = -2*0.7978845608028654*1.4426950408889634
        A(f's_mov_b32 s24, {hx(f2u(c1*0.044715))}\ns_mov_b32 s25, s24\ns_mov_b32 s26, {hx(f2u(c1))}\ns_mov_b32 s27, s26\nv_mov_b32 v10, s26\nv_mov_b32 v11, s26')
    A('s_waitcnt lgkmcnt(0)\ns_nop 4')
    for qq in range(2):
        for p in range(2):
            for i in range(4):
                a = ACC+(qq*2+p)*4+i; t = 80+8*p+2*i
                A(f'v_fma_f32 v{a}, -v{t}, v{96+2*qq}, v{a}')
                if q: A(f'v_mul_f32 v{a}, v{a}, v{t+1}')
                A(f'v_mul_f32 v{a}, v{a}, v{97+2*qq}')
        if not q:
            for i in range(4):
                a = ACC+qq*8+2*i; t = FR+2*i
                A(f'v_pk_mul_f32 {vr(t,2)}, {vr(a,2)}, {vr(a,2)}\nv_pk_fma_f32 {vr(t,2)}, {vr(t,2)}, s[24:25], v[10:11]\nv_pk_mul_f32 {vr(t,2)}, {vr(t,2)}, {vr(a,2)}')
            for i in range(8): A(f'v_exp_f32 v{FR+i}, v{FR+i}')
            for i in range(8): A(f'v_add_f32 v{FR+i}, 1.0, v{FR+i}')
            for i in range(8): A(f'v_rcp_f32 v{FR+i}, v{FR+i}')
            for i in range(4): A(f'v_pk_mul_f32 {vr(ACC+qq*8+2*i,2)}, {vr(ACC+qq*8+2*i,2)}, {vr(FR+2*i,2)}')
        for i in range(4): A(f'v_cvt_pk_bf16_f32 v{48+4*qq+i}, v{ACC+qq*8+2*i}, v{ACC+qq*8+2*i+1}')
        A(f'buffer_store_dwordx4 {vr(48+4*qq,4)}, v1, s[20:23], s{16+qq} offen')
    A.end(int(name[1])-1, 20, f'{name}_end')
    A.label(f'{name}_end'); A('s_endpgm')
    return A.text(), 100, TAB+1536, NWG, 576
```

```python
from common import *
LOG2E = 1.4426950408889634
SC = 96 ** -0.5 * LOG2E
def gen_k1():
    A = Asm()
    NS = 7; RING = 24576
    A('s_cmp_ge_u32 s2, 231\ns_cbranch_scc1 k1_end')
    A.stamp(0)
    A('s_load_dwordx16 s[4:19], s[0:1], 0\ns_load_dwordx2 s[20:21], s[0:1], 72')
    A('v_lshrrev_b32 v1, 6, v0\nv_and_b32 v0, 63, v0\ns_nop 0\nv_readfirstlane_b32 s3, v1')
    A('v_lshrrev_b32 v2, 4, v0')
    A('v_bfe_u32 v3, v0, 2, 2')
    A('v_and_b32 v4, 1, v2\nv_lshlrev_b32 v4, 1, v4\nv_and_b32 v5, 3, v0\nv_xor_b32 v4, v4, v5\nv_lshlrev_b32 v4, 4, v4')
    A('v_lshrrev_b32 v6, 2, v0\nv_lshlrev_b32 v6, 6, v6\nv_and_b32 v7, 1, v2\nv_lshl_add_u32 v6, v7, 5, v6\nv_lshl_add_u32 v6, v5, 3, v6\nv_xor_b32 v7, 32, v6')
    A('v_lshlrev_b32 v8, 4, v0')
    A('s_waitcnt lgkmcnt(0)')
    A.stamp(1)
    A.srd(28, 20, WS_USED)
    A('s_cmp_ge_u32 s2, 192\ns_cbranch_scc1 k1_helper')
    A.srd(24, 4, 1536*768); A.srd(32, 6, 384*2304)
    A('s_and_b32 s36, s2, 7\ns_lshr_b32 s37, s36, 1\ns_and_b32 s36, s36, 1\ns_lshr_b32 s38, s2, 3\ns_lshl_b32 s38, s38, 1\ns_add_u32 s38, s38, s36\ns_lshl_b32 s38, s38, 3')
    A('v_lshrrev_b32 v9, 3, v0\ns_lshl_b32 s39, s3, 3\nv_add_u32 v9, s39, v9')
    A('v_and_b32 v10, 3, v9\nv_mul_u32_u24 v10, 384, v10\nv_lshrrev_b32 v11, 2, v9\nv_add3_u32 v10, v10, v11, s38\nv_mul_u32_u24 v10, 768, v10')
    A('v_and_b32 v11, 7, v0\nv_lshl_add_u32 v10, v11, 4, v10')
    for i in range(6): A(f'buffer_load_dwordx4 {vr(16+4*i,4)}, v10, s[24:27], 0 offen offset:{128*i}')
    A('v_lshl_add_u32 v12, v2, 3, v3\nv_mul_u32_u24 v12, 2304, v12\nv_add_u32 v12, v12, v4')
    A('s_mul_i32 s40, s37, 192\ns_lshl_b32 s41, s3, 6\ns_add_u32 s40, s40, s41')
    A(f's_mul_i32 s41, s3, {NS*6144}\ns_add_u32 s41, s41, {RING}')
    def dma(j):
        for m in range(3):
            for hh in range(2):
                A(f's_add_u32 m0, s41, {(j%NS)*6144 + m*2048 + hh*1024}\ns_add_u32 s42, s40, {j*73728 + hh*9216 + m*768}')
                A('buffer_load_dwordx4 v12, s[32:35], s42 offen lds')
    A('s_cmp_eq_u32 s3, 3\ns_cbranch_scc1 k1_ln3')
    for j in range(NS): dma(j)
    A(f's_waitcnt vmcnt({6*NS})\ns_branch k1_ln')
    A.label('k1_ln3'); A('s_waitcnt vmcnt(0)')
    A.label('k1_ln')
    A.stamp(2)
    for i in range(24):
        A(f'v_lshlrev_b32 v{40+2*i}, 16, v{16+i}\nv_and_b32 v{41+2*i}, 0xffff0000, v{16+i}')
    A('v_pk_add_f32 v[14:15], v[40:41], v[42:43]')
    for i in range(2, 24): A(f'v_pk_add_f32 v[14:15], v[14:15], {vr(40+2*i,2)}')
    A('v_add_f32 v14, v14, v15')
    def red8(x):
        A(f's_nop 1\nv_add_f32_dpp v{x}, v{x}, v{x} quad_perm:[1,0,3,2] row_mask:0xf bank_mask:0xf')
        A(f's_nop 1\nv_add_f32_dpp v{x}, v{x}, v{x} quad_perm:[2,3,0,1] row_mask:0xf bank_mask:0xf')
        A(f's_nop 1\nv_add_f32_dpp v{x}, v{x}, v{x} row_half_mirror row_mask:0xf bank_mask:0xf')
    red8(14)
    A(f'v_mul_f32 v14, {hx(f2u(-1.0/384))}, v14\nv_mov_b32 v15, v14')
    for i in range(24): A(f'v_pk_add_f32 {vr(40+2*i,2)}, {vr(40+2*i,2)}, v[14:15]')
    A('v_pk_mul_f32 v[14:15], v[40:41], v[40:41]')
    for i in range(1, 24): A(f'v_pk_fma_f32 v[14:15], {vr(40+2*i,2)}, {vr(40+2*i,2)}, v[14:15]')
    A('v_add_f32 v14, v14, v15')
    red8(14)
    A(f'v_mov_b32 v15, {hx(f2u(1e-5))}\nv_fmac_f32 v15, {hx(f2u(1.0/384))}, v14\nv_rsq_f32 v14, v15\ns_nop 0\nv_mov_b32 v15, v14')
    for i in range(24):
        A(f'v_pk_mul_f32 {vr(40+2*i,2)}, {vr(40+2*i,2)}, v[14:15]\nv_cvt_pk_bf16_f32 v{16+i}, v{40+2*i}, v{41+2*i}')
    A('v_lshrrev_b32 v13, 4, v9\nv_mul_u32_u24 v13, 12288, v13\nv_lshrrev_b32 v14, 2, v11\nv_lshl_add_u32 v13, v14, 10, v13')
    A('v_and_b32 v14, 3, v11\nv_lshl_add_u32 v13, v14, 8, v13\nv_and_b32 v14, 15, v9\nv_lshl_add_u32 v13, v14, 4, v13')
    for i in range(6): A(f'ds_write_b128 v13, {vr(16+4*i,4)} offset:{2048*i}')
    A('s_waitcnt lgkmcnt(0)\ns_barrier\ns_cmp_eq_u32 s3, 3\ns_cbranch_scc1 k1_end')
    A.stamp(3)
    XF = 16; ACC = 112; FB = 160
    for i in range(24): A(f'ds_read_b128 {vr(XF+4*i,4)}, v8 offset:{1024*i}')
    A('v_add_u32 v6, s41, v6\nv_add_u32 v7, s41, v7')
    def reads(j):
        for m in range(3):
            for c in range(2):
                for hh in range(2):
                    A(f'ds_read_b64_tr_b16 {vr(FB+(j&1)*24+(m*2+c)*4+hh*2,2)}, v{6+c} offset:{(j%NS)*6144+m*2048+hh*1024}')
    A(f's_waitcnt vmcnt({6*(NS-1)}) lgkmcnt(0)')
    A.stamp(4)
    reads(0); A('s_waitcnt lgkmcnt(0)'); dma(NS)
    for j in range(12):
        if j < 11:
            A(f's_waitcnt vmcnt({6*(min(11, j+NS)-(j+1))})'); reads(j+1)
        for tb in range(2):
            for m in range(3):
                for c in range(2):
                    d = ACC + (tb*6+m*2+c)*4; w = FB+(j&1)*24+(m*2+c)*4; x = XF+(tb*12+j)*4
                    A(mfma32(d, w, x, '0' if j == 0 else None) if m < 2 else mfma32(d, x, w, '0' if j == 0 else None))
        if j < 11:
            A('s_waitcnt lgkmcnt(0)')
            if j+1+NS < 12: dma(j+1+NS)
    A('s_nop 7')
    A.stamp(5)
    for tb in range(2):
        for i in range(12):
            A(f'v_cvt_pk_bf16_f32 v{16+tb*12+i}, v{ACC+tb*24+2*i}, v{ACC+tb*24+2*i+1}')
    A('v_add_u32 v9, s41, v8\ns_nop 1')
    for tb in range(2): A(mfma32(40+4*tb, 16+tb*12+4, 16+tb*12, '0'))
    A('s_nop 7')
    for tb in range(2): A(f'ds_write_b128 v9, {vr(40+4*tb,4)} offset:{1024*tb}')
    A(f'v_add_u32 v9, {RING}, v8\nv_add_u32 v10, {RING+NS*6144}, v8\nv_add_u32 v11, {RING+2*NS*6144}, v8')
    A('s_waitcnt lgkmcnt(0)\ns_barrier')
    for tb in range(2):
        for w in range(3): A(f'ds_read_b128 {vr(48+tb*12+4*w,4)}, v{9+w} offset:{1024*tb}')
    A(f'v_bfe_u32 v12, v0, 2, 2\nv_cmp_eq_u32 vcc, v12, v2\ns_mov_b32 s42, {hx(f2u(SC))}')
    A('v_and_b32 v13, 3, v0\nv_mul_u32_u24 v13, 0x48000, v13\nv_lshl_add_u32 v13, v2, 8, v13\nv_lshl_add_u32 v13, v12, 4, v13')
    A(f's_lshr_b32 s43, s38, 4\ns_mul_i32 s43, s43, 12\ns_mul_i32 s44, s37, 3\ns_add_u32 s43, s43, s44\ns_add_u32 s43, s43, s3\ns_lshl_b32 s43, s43, 10')
    A(f's_and_b32 s44, s38, 15\ns_lshl_b32 s44, s44, 4\ns_add_u32 s43, s43, s44\ns_add_u32 s43, s43, {OT}')
    A('s_waitcnt lgkmcnt(0)')
    for tb in range(2):
        b = 48+tb*12
        for i in range(4): A(f'v_add_f32 v{b+i}, v{b+i}, v{b+4+i}\nv_add_f32 v{b+i}, v{b+i}, v{b+8+i}')
        A(f'v_max3_f32 v{b+4}, v{b}, v{b+1}, v{b+2}\nv_max_f32 v{b+4}, v{b+4}, v{b+3}')
        for i in range(4): A(f'v_sub_f32 v{b+i}, v{b+i}, v{b+4}\nv_mul_f32 v{b+i}, s42, v{b+i}\nv_exp_f32 v{b+i}, v{b+i}')
        A(f's_nop 0\nv_add_f32 v{b+4}, v{b}, v{b+1}\nv_add_f32 v{b+5}, v{b+2}, v{b+3}\nv_add_f32 v{b+4}, v{b+4}, v{b+5}\nv_rcp_f32 v{b+4}, v{b+4}\ns_nop 0')
        A(f'v_cndmask_b32 v{b+4}, 0, v{b+4}, vcc')
        for i in range(4): A(f'v_mul_f32 v{b+i}, v{b+i}, v{b+4}')
        A(f'v_cvt_pk_bf16_f32 v{b+6}, v{b}, v{b+1}\nv_cvt_pk_bf16_f32 v{b+7}, v{b+2}, v{b+3}\ns_nop 1')
        for c in range(2):
            A(f'v_mfma_f32_16x16x16_bf16 {vr(80+tb*8+4*c,4)}, {vr(16+tb*12+8+2*c,2)}, {vr(b+6,2)}, 0')
    A('s_nop 7')
    for tb in range(2):
        for i in range(4): A(f'v_cvt_pk_bf16_f32 v{96+tb*4+i}, v{80+tb*8+2*i}, v{81+tb*8+2*i}')
        A(f'buffer_store_dwordx4 {vr(96+tb*4,4)}, v13, s[28:31], s43 offen offset:{64*tb}')
    A.end(0, 28, 'k1_end'); A('s_endpgm')
    A.label('k1_helper')
    A('s_sub_u32 s36, s2, 192\ns_lshl_b32 s36, s36, 2\ns_add_u32 s36, s36, s3')
    A(f's_cmp_ge_u32 s36, 20\ns_cbranch_scc1 k1_nz\ns_lshl_b32 s37, s36, 10\ns_add_u32 s37, s37, {FL}\nv_mov_b32 v16, 0\nv_mov_b32 v17, 0\nv_mov_b32 v18, 0\nv_mov_b32 v19, 0\nbuffer_store_dwordx4 v[16:19], v8, s[28:31], s37 offen')
    A.label('k1_nz')
    cases = [(0, 36, 10, 2304, 384, WF_QS, 12, CS_QS), (36, 84, 14, 3072, 384, WF_1, 12, CS_1), (84, 96, 8, 768, 384, WF_PT, 12, 0),
             (96, 108, 12, 768, 384, WF_PS, 12, 0)] + [(108+12*q, 120+12*q, 16, 768, 1536, WF_2 + q*12*KB, 48, 0) for q in range(4)]
    for ci, (lo, hi, p, ld, rows, dst, ks, cs) in enumerate(cases):
        if ci < len(cases)-1: A(f's_cmp_ge_u32 s36, {hi}\ns_cbranch_scc1 k1_h{ci+1}')
        A.srd(32, p, ld*rows)
        k0 = (ci-4)*384 if ci >= 4 else 0
        A(f's_mov_b32 s37, {ld}\ns_sub_u32 s38, s36, {lo}\ns_mov_b32 s39, {k0*ld}\ns_mov_b32 s40, {dst}\ns_mov_b32 s41, {ks*KB}\ns_mov_b32 s42, {cs}')
        if ci < len(cases)-1:
            A('s_branch k1_hgo'); A.label(f'k1_h{ci+1}')
    A.label('k1_hgo')
    A('v_lshrrev_b32 v12, 2, v0\nv_mul_lo_u32 v12, v12, s37\nv_add_u32 v12, v12, v4')
    A('v_lshl_add_u32 v13, v2, 3, v3\nv_mul_lo_u32 v13, v13, s37\nv_add_u32 v13, v13, v4')
    A('s_lshl_b32 s43, s38, 6\ns_add_u32 s39, s39, s43\ns_lshl_b32 s43, s37, 4\ns_lshl_b32 s47, s37, 2\ns_mul_i32 s44, s3, 24576\ns_mov_b32 m0, s44')
    A(f's_cmp_lg_u32 s40, {WF_PT}\ns_cbranch_scc1 k1_hnat\nv_mov_b32 v13, v12\ns_mov_b32 s47, s43')
    A.label('k1_hnat')
    for j in range(12):
        v = 13 if j % 3 == 1 else 12
        A(f's_add_u32 s48, s39, s{47 if j % 3 == 1 else 43}\nbuffer_load_dwordx4 v{v}, s[32:35], s39 offen lds\ns_add_u32 m0, m0, 1024\ns_add_u32 s39, s39, s43')
        A(f'buffer_load_dwordx4 v{v}, s[32:35], s48 offen lds\ns_add_u32 m0, m0, 1024\ns_add_u32 s39, s39, s43')
    A('v_add_u32 v6, s44, v6\nv_add_u32 v7, s44, v7')
    A('s_lshl_b32 s45, s38, 1\ns_mul_i32 s45, s45, s41\ns_add_u32 s45, s45, s40\ns_add_u32 s46, s45, s41')
    for i in range(4): A(f'v_mov_b32 v{120+i}, 0x3f803f80')
    A.stamp(2); A('s_waitcnt vmcnt(0)'); A.stamp(3)
    for j in range(12):
        for c in range(2):
            for hh in range(2): A(f'ds_read_b64_tr_b16 {vr(16+(j*2+c)*4+hh*2,2)}, v{6+c} offset:{j*2048+hh*1024}')
        if j % 3 == 2: A('s_waitcnt lgkmcnt(0)')
    for j in range(12):
        for c in range(2):
            A(f'buffer_store_dwordx4 {vr(16+(j*2+c)*4,4)}, v8, s[28:31], s{45+c} offen offset:{(j%4)*1024}')
            A(mfma32(112+4*c, 16+(j*2+c)*4, 120, '0' if j == 0 else None))
        if j % 4 == 3: A('s_add_u32 s45, s45, 4096\ns_add_u32 s46, s46, 4096')
    A('s_cmp_eq_u32 s42, 0\ns_cbranch_scc1 k1_hend')
    A('s_lshl_b32 s43, s38, 7\ns_add_u32 s42, s42, s43\nv_lshlrev_b32 v9, 4, v2\nv_and_b32 v10, 15, v0\nv_cmp_eq_u32 vcc, 0, v10\ns_nop 7\ns_and_saveexec_b64 s[48:49], vcc')
    for c in range(2): A(f'buffer_store_dwordx4 {vr(112+4*c,4)}, v9, s[28:31], s42 offen offset:{64*c}')
    A.label('k1_hend'); A('s_mov_b64 exec, -1'); A.end(0, 28, 'k1_end')
    A.label('k1_end'); A('s_endpgm')
    return A.text(), 208, 153600, 231, 256
```

```python
from common import *
from k1 import SC
def gen_k4():
    A = Asm()
    A('s_cmp_ge_u32 s2, 192\ns_cbranch_scc1 k4_end')
    A.stamp(0)
    A('s_load_dwordx2 s[8:9], s[0:1], 72')
    A('v_lshrrev_b32 v1, 6, v0\nv_and_b32 v0, 63, v0\ns_and_b32 s10, s2, 7\nv_readfirstlane_b32 s3, v1')
    A('s_lshr_b32 s11, s2, 3\ns_lshl_b32 s12, s10, 1\ns_and_b32 s13, s11, 1\ns_add_u32 s12, s12, s13\ns_lshr_b32 s13, s11, 1')
    A('v_lshlrev_b32 v1, 4, v0\nv_lshlrev_b32 v2, 2, v0')
    A(f's_mul_i32 s14, s12, {72*KB}\ns_mul_i32 s15, s13, {6*KB}\ns_add_u32 s15, s15, s14\ns_add_u32 s15, s15, {QF}')
    A(f's_mul_i32 s16, s3, {18*KB}\ns_add_u32 s14, s14, s16\ns_add_u32 s16, s14, {KF}\ns_add_u32 s17, s14, {VF}')
    A('s_waitcnt lgkmcnt(0)')
    A.stamp(1)
    A.srd(20, 8, WS_USED)
    Q = 8; K = 32; V = 104; S = 176; P = 8; O = 32; L = 80; ONE = 224
    def ld(base, n, s):
        for i in range(n):
            A(f'buffer_load_dwordx4 {vr(base+4*i,4)}, v1, s[20:23], s{s} offen offset:{(i%4)*1024}')
            if i % 4 == 3: A(f's_add_u32 s{s}, s{s}, 4096')
    ld(Q, 6, 15); ld(K, 18, 16); ld(V, 18, 17)
    for i in range(4): A(f'v_mov_b32 v{ONE+i}, 0x3f803f80')
    A(f's_mov_b32 s24, {hx(f2u(SC))}\ns_lshl_b32 s25, s3, 9\nv_add_u32 v3, s25, v2')
    A.stamp(2)
    for kt in range(6):
        A(f's_waitcnt vmcnt({18+3*(5-kt)})')
        for j in range(3):
            for a in range(2): A(mfma32(S+(a*6+kt)*4, K+(kt*3+j)*4, Q+(a*3+j)*4, '0' if j == 0 else None))
    A.stamp(3)
    A('s_nop 7')
    for a in range(2):
        b = S+a*24
        A(f'v_max3_f32 v{4+a}, v{b}, v{b+1}, v{b+2}')
        for i in range(3, 23, 2): A(f'v_max3_f32 v{4+a}, v{4+a}, v{b+i}, v{b+i+1}')
        A(f'v_max_f32 v{4+a}, v{4+a}, v{b+23}')
        red_g(A, 4+a, 6, 'v_max_f32')
        A(f'ds_write_b32 v3, v{4+a} offset:{256*a}')
    A('s_waitcnt lgkmcnt(0)\ns_barrier')
    for a in range(2):
        for w in range(4): A(f'ds_read_b32 v{K+4*a+w}, v2 offset:{512*w+256*a}')
    A('s_waitcnt lgkmcnt(0)')
    for a in range(2):
        A(f'v_max3_f32 v{4+a}, v{K+4*a}, v{K+4*a+1}, v{K+4*a+2}\nv_max_f32 v{4+a}, v{4+a}, v{K+4*a+3}\nv_mul_f32 v{4+a}, s24, v{4+a}')
    for a in range(2):
        b = S+a*24
        for i in range(24): A(f'v_fma_f32 v{b+i}, v{b+i}, s24, -v{4+a}')
        for i in range(24): A(f'v_exp_f32 v{b+i}, v{b+i}')
        A('s_nop 0')
        for i in range(12): A(f'v_cvt_pk_bf16_f32 v{P+a*12+i}, v{b+2*i}, v{b+2*i+1}')
    A.stamp(4)
    A('s_nop 1')
    for kp in range(3):
        A(f's_waitcnt vmcnt({6*(2-kp)})')
        for a in range(2):
            for dt in range(6): A(mfma32(O+(a*6+dt)*4, V+(kp*6+dt)*4, P+(a*3+kp)*4, '0' if kp == 0 else None))
            A(mfma32(L+4*a, ONE, P+(a*3+kp)*4, '0' if kp == 0 else None))
    A.stamp(5)
    A('s_mul_i32 s25, s3, 12288\ns_add_u32 s25, s25, 4096\nv_add_u32 v6, s25, v1\ns_mul_i32 s25, s3, 3072\ns_add_u32 s25, s25, 4096\nv_add_u32 v7, s25, v1')
    A('s_lshr_b32 s26, s3, 1\ns_lshl_b32 s25, s26, 8\nv_add_u32 v2, s25, v2\ns_nop 2')
    for i in range(12): A(f'ds_write_b128 v6, {vr(O+4*i,4)} offset:{1024*i}')
    for a in range(2): A(f'ds_write_b32 v3, v{L+4*a} offset:{2048+256*a}')
    A('s_lshr_b32 s27, s12, 2\ns_mul_i32 s27, s27, 24\ns_lshl_b32 s28, s13, 1\ns_add_u32 s27, s27, s28\ns_add_u32 s27, s27, s26\ns_mul_i32 s27, s27, 12\ns_and_b32 s28, s12, 3\ns_mul_i32 s28, s28, 3\ns_add_u32 s27, s27, s28\ns_lshl_b32 s27, s27, 10')
    A(f's_add_u32 s27, s27, {OS}\ns_and_b32 s28, s3, 1\ns_cmp_eq_u32 s28, 1')
    A('s_cselect_b32 s30, 1032, 0\ns_cselect_b32 s31, 2048, 8\ns_cselect_b32 s32, 1032, 0\ns_add_u32 s32, s32, 1024\ns_add_u32 s30, s30, s27\ns_add_u32 s31, s31, s27\ns_add_u32 s32, s32, s27')
    A('s_waitcnt lgkmcnt(0)\ns_barrier')
    for w in range(4): A(f'ds_read_b32 v{8+w}, v2 offset:{2048+512*w}')
    for w in range(4):
        for i in range(3): A(f'ds_read_b128 {vr(V+(w*3+i)*4,4)}, v7 offset:{w*12288+i*1024}')
    A('s_waitcnt lgkmcnt(12)\nv_add_f32 v8, v8, v9\nv_add_f32 v10, v10, v11\nv_add_f32 v8, v8, v10\nv_rcp_f32 v8, v8\ns_nop 0\nv_mov_b32 v9, v8\ns_waitcnt lgkmcnt(0)')
    for i in range(6):
        A(f'v_pk_add_f32 {vr(V+2*i,2)}, {vr(V+2*i,2)}, {vr(V+12+2*i,2)}\nv_pk_add_f32 {vr(V+24+2*i,2)}, {vr(V+24+2*i,2)}, {vr(V+36+2*i,2)}')
    for i in range(6):
        A(f'v_pk_add_f32 {vr(V+2*i,2)}, {vr(V+2*i,2)}, {vr(V+24+2*i,2)}\nv_pk_mul_f32 {vr(V+2*i,2)}, {vr(V+2*i,2)}, v[8:9]\nv_cvt_pk_bf16_f32 v{12+i}, v{V+2*i}, v{V+2*i+1}')
    for i in range(3): A(f'buffer_store_dwordx2 {vr(12+2*i,2)}, v1, s[20:23], s{30+i} offen')
    A.end(3, 20, 'k4_end')
    A.label('k4_end'); A('s_endpgm')
    return A.text(), 228, 4096+4*12288, 192, 256
```

```python
from common import *
from k1 import SC
RES, ACC, WK, W25 = 16, 24, 60, 188
RED = 36864; TAB3 = 73728; TAB6 = TAB3 + 2048; LDSB = TAB6 + 2048
def w37(i): return ar(4*i)
def w6(i): return ar(144+4*i) if i < 28 else vr(224+4*(i-28), 4)
def gen_kb():
    A = Asm(); nst = [0]
    def stamp():
        if STAMPS:
            i = nst[0]; nst[0] += 1
            A(f's_memrealtime s[90:91]\ns_waitcnt lgkmcnt(0)\nv_writelane_b32 v22, s90, {i}')
    A('s_cmp_ge_u32 s2, 256\ns_cbranch_scc1 kb_end')
    stamp()
    A('s_load_dwordx2 s[4:5], s[0:1], 0\ns_load_dwordx2 s[6:7], s[0:1], 56\ns_load_dwordx2 s[8:9], s[0:1], 72')
    A('v_mov_b32 v9, v0\nv_lshrrev_b32 v1, 6, v0\nv_and_b32 v0, 63, v0\ns_and_b32 s10, s2, 7\nv_readfirstlane_b32 s3, v1')
    A('s_lshr_b32 s11, s2, 3\ns_lshl_b32 s12, s10, 2\ns_and_b32 s13, s11, 3\ns_add_u32 s12, s12, s13\ns_lshr_b32 s13, s11, 2')
    A('v_lshlrev_b32 v1, 4, v0\nv_lshrrev_b32 v2, 4, v0\nv_and_b32 v3, 15, v0\nv_lshlrev_b32 v5, 2, v0')
    A('s_mul_i32 s14, s12, 3\ns_mul_i32 s15, s13, 3\ns_add_u32 s19, s14, s3')
    A('s_and_b32 s68, s13, 1\ns_and_b32 s69, s3, 1')
    for p, o in ((68, 62), (69, 65)):
        A(f's_mov_b32 s{o}, s{p}\ns_add_u32 s{o+1}, s{p}, 1\ns_cmp_eq_u32 s{p}, 1\ns_cselect_b32 s{o+2}, 0, 2')
    A('s_lshr_b32 s42, s13, 1\ns_mul_i32 s42, s42, 3\ns_mul_i32 s38, s19, 12\ns_add_u32 s38, s38, s42\ns_lshl_b32 s38, s38, 10\ns_lshl_b32 s42, s68, 9\ns_add_u32 s39, s38, s42\ns_add_u32 s39, s39, 1024\ns_lshl_b32 s42, s68, 11\ns_add_u32 s38, s38, s42')
    A('s_lshl_b32 s70, s69, 11\ns_lshl_b32 s71, s69, 9\ns_add_u32 s71, s71, 1024\ns_mov_b32 s72, 0xffff\ns_mov_b32 s73, 0xffff')
    A('v_lshrrev_b32 v23, 1, v2\nv_lshl_add_u32 v23, v23, 4, v3\nv_lshlrev_b32 v23, 4, v23')
    A('v_mul_u32_u24 v4, 768, v3\nv_lshl_add_u32 v4, v2, 3, v4\ns_mul_i32 s41, s19, 12288\ns_lshl_b32 s42, s15, 5\ns_add_u32 s41, s41, s42')
    for b in range(3): A(f's_lshl_b32 s42, s{62+b}, 5\ns_add_u32 s{74+b}, s41, s42')
    A('s_mul_i32 s16, s14, 12288\ns_mul_i32 s17, s3, 3072\ns_add_u32 s16, s16, s17')
    A('s_mul_i32 s18, s15, 12288\ns_add_u32 s18, s18, s17')
    A('s_lshl_b32 s44, s13, 2\ns_add_u32 s44, s44, s3\ns_mul_i32 s44, s44, 36864')
    for b in range(3): A(f's_mul_i32 s42, s{62+b}, 12288\ns_add_u32 s{77+b}, s18, s42\ns_mul_i32 s42, s{65+b}, 12288\ns_add_u32 s{80+b}, s44, s42')
    A(f's_lshl_b32 s45, s12, 7\ns_add_u32 s45, s45, {FL}\ns_lshl_b32 s46, s13, 2\ns_add_u32 s46, s46, s45')
    A('s_waitcnt lgkmcnt(0)')
    A.srd(20, 8, WS_USED); A.srd(24, 4, 1536*768); A.srd(28, 6, 1536*768)
    def ldrun(dst, n, base, const, sc=''):
        for i in range(n):
            if i % 4 == 0: A(f's_add_u32 s42, s{base}, {const + i*1024}')
            A(f'buffer_load_dwordx4 {dst(i)}, v1, s[20:23], s42 offen offset:{(i%4)*1024}{sc}')
    def ld1(dst, base, const, i, sc=''):
        A(f's_add_u32 s42, s{base}, {const + i*1024}\nbuffer_load_dwordx4 {dst}, v1, s[20:23], s42 offen{sc}')
    def half1(d, soff):
        A(f'v_mov_b32 v{d+2}, v{d}\nv_mov_b32 v{d+3}, v{d+1}\ns_nop 1\nv_permlane16_swap_b32 v{d}, v{d+2}\nv_permlane16_swap_b32 v{d+1}, v{d+3}')
        A(f's_mov_b64 exec, s[72:73]\nbuffer_store_dwordx4 {vr(d,4)}, v23, s[20:23], {soff} offen sc1\ns_mov_b64 exec, -1')
    def half2(d, va, soff):
        A(f's_nop 1\nv_permlane16_swap_b32 v{d}, v{d+2}\nv_permlane16_swap_b32 v{d+1}, v{d+3}\nbuffer_store_dwordx4 {vr(d,4)}, v{va}, s[20:23], {soff} offen sc1')
    def signal(soff_expr, n=0):
        A(f's_waitcnt vmcnt({n})\ns_barrier')
        stamp()
        l = f'kb_s{nst[0]}_{len(A.l)}'
        A(f's_cmp_lg_u32 s3, 0\ns_cbranch_scc1 {l}\n{soff_expr}\ns_mov_b64 exec, 1\nv_mov_b32 v6, 1\nv_mov_b32 v7, 0\nbuffer_store_dword v6, v7, s[20:23], s42 offen sc1\ns_mov_b64 exec, -1')
        A.label(l)
    def wait(soff_expr, n):
        l = f'kb_w{len(A.l)}'
        A(f's_cmp_lg_u32 s3, 0\ns_cbranch_scc1 {l}_d\n{soff_expr}\ns_mov_b32 s43, 0x40000\ns_mov_b64 exec, {hx((1<<n)-1)}')
        A.label(l)
        A(f'buffer_load_dword v6, v5, s[20:23], s42 offen sc1\ns_sub_u32 s43, s43, 1\ns_cbranch_scc1 {l}_x\ns_waitcnt vmcnt(0)\nv_cmp_ne_u32 vcc, 1, v6\ns_cbranch_vccnz {l}')
        A.label(l + '_x'); A('s_mov_b64 exec, -1')
        A.label(l + '_d'); A('s_barrier')
        stamp()
    def g48(name, KW, a_frag, wf, nafter, dst, st, mid=None):
        for j in range(KW):
            A(f's_waitcnt vmcnt({min(63, nafter + 3*(KW-1-j))})')
            for a in range(3):
                for b in range(3): A(mfma32(ACC+(a*3+b)*4, wf(b*KW+j), a_frag(j*3+a), '0' if j == 0 else None))
        stamp()
        if mid: mid()
        A(f's_mul_i32 s42, s3, 9216\ns_add_u32 s42, s42, {RED}\nv_add_u32 v6, s42, v1\ns_mul_i32 s42, s3, 3072\ns_add_u32 s42, s42, {RED}\nv_add_u32 v7, s42, v1\ns_nop 2')
        for i in range(9): A(f'ds_write_b128 v6, {vr(ACC+4*i,4)} offset:{1024*i}')
        A(f's_waitcnt lgkmcnt(0)\ns_barrier\ns_cmp_eq_u32 s3, 3\ns_cbranch_scc1 {name}_fin')
        for w in range(4):
            for b in range(3): A(f'ds_read_b128 {vr(WK+(w*3+b)*4,4)}, v7 offset:{w*9216+b*1024}')
        for i in range(6): A(f'v_lshlrev_b32 v{ACC+2*i}, 16, v{RES+i}\nv_and_b32 v{ACC+2*i+1}, 0xffff0000, v{RES+i}')
        for w in range(4):
            A(f's_waitcnt lgkmcnt({3*(3-w)})')
            for i in range(6): A(f'v_pk_add_f32 {vr(ACC+2*i,2)}, {vr(ACC+2*i,2)}, {vr(WK+w*12+2*i,2)}')
        for i in range(6): A(f'v_cvt_pk_bf16_f32 v{RES+i}, v{ACC+2*i}, v{ACC+2*i+1}')
        if dst == 'out':
            for b in range(3): A(f'buffer_store_dwordx2 {vr(RES+2*b,2)}, v4, s[28:31], s{74+b} offen')
        else:
            A(f's_add_u32 s42, s38, {dst}\nbuffer_store_dwordx4 {vr(RES,4)}, v1, s[20:23], s42 offen sc1\nv_mov_b32 v12, v{RES+4}\nv_mov_b32 v13, v{RES+5}\ns_add_u32 s42, s39, {dst}')
            half1(12, 's42')
        if st is not None:
            T = WK
            for i in range(6): A(f'v_lshlrev_b32 v{ACC+2*i}, 16, v{RES+i}\nv_and_b32 v{ACC+2*i+1}, 0xffff0000, v{RES+i}')
            A(f'v_pk_add_f32 {vr(T,2)}, {vr(ACC,2)}, {vr(ACC+2,2)}\nv_pk_mul_f32 {vr(T+2,2)}, {vr(ACC,2)}, {vr(ACC,2)}')
            for i in range(2, 6): A(f'v_pk_add_f32 {vr(T,2)}, {vr(T,2)}, {vr(ACC+2*i,2)}')
            for i in range(1, 6): A(f'v_pk_fma_f32 {vr(T+2,2)}, {vr(ACC+2*i,2)}, {vr(ACC+2*i,2)}, {vr(T+2,2)}')
            A(f'v_add_f32 v{T}, v{T}, v{T+1}\nv_add_f32 v{T+1}, v{T+2}, v{T+3}')
            red_g(A, T, T+4, 'v_add_f32'); red_g(A, T+1, T+4, 'v_add_f32')
            A(f'v_lshlrev_b32 v6, 6, v0\ns_lshl_b32 s42, s19, 10\ns_lshl_b32 s43, s13, 3\ns_add_u32 s42, s42, s43\ns_add_u32 s42, s42, {st}')
            A(f's_mov_b64 exec, 0xffff\nbuffer_store_dwordx2 {vr(T,2)}, v6, s[20:23], s42 offen sc1\ns_mov_b64 exec, -1')
        A.label(f'{name}_fin')
    def a48(off, sc):
        for a in range(3): A(f's_add_u32 s{32+a}, s16, {off + a*12288}')
        for j in range(3):
            for a in range(3): A(f'buffer_load_dwordx4 {vr(WK+(j*3+a)*4,4)}, v1, s[20:23], s{32+a} offen offset:{j*1024}{sc}')
    def w48(off):
        for b in range(3): ldrun(lambda i: vr(W25+(b*3+i)*4, 4), 3, 77+b, off)
    def g192(name, Xoff, ST, TAB, wf, prefetch, epi):
        A(f's_min_u32 s43, s3, 2\ns_add_u32 s42, s14, s43\ns_lshl_b32 s42, s42, 10\ns_add_u32 s42, s42, {ST}\nv_lshlrev_b32 v6, 6, v3\nv_lshl_add_u32 v6, v2, 4, v6')
        A('buffer_load_dwordx4 v[12:15], v6, s[20:23], s42 offen sc1')
        a48(Xoff, ' sc1')
        npf = 0
        A(f's_mul_i32 s42, s3, 9216\nv_add_u32 v6, s42, v1\ns_lshl_b32 s43, s43, 7\ns_add_u32 s43, s43, {TAB}\nv_lshl_add_u32 v7, v3, 3, s43')
        A(f's_waitcnt vmcnt({npf+9})\nv_pk_add_f32 v[12:13], v[12:13], v[14:15]')
        red_g(A, 12, 14, 'v_add_f32'); red_g(A, 13, 14, 'v_add_f32')
        A(f'v_mul_f32 v12, {hx(f2u(1/384))}, v12\nv_mul_f32 v13, {hx(f2u(1/384))}, v13\nv_fma_f32 v13, -v12, v12, v13\nv_max_f32 v13, 0, v13\nv_add_f32 v13, {hx(f2u(1e-5))}, v13\nv_rsq_f32 v13, v13\ns_nop 0\nds_write_b64 v7, v[12:13]')
        for i in range(9): A(f's_waitcnt vmcnt({npf+8-i})\nds_write_b128 v6, {vr(WK+4*i,4)} offset:{1024*i}')
        A('s_waitcnt lgkmcnt(0)\ns_barrier')
        stamp()
        epi(lambda swap: main192(wf, swap, prefetch))
    def main192(wf, swap, prefetch):
        FB = WK
        def rd(j):
            for a in range(3): A(f'ds_read_b128 {vr(FB+(j%3)*12+4*a,4)}, v{(13+a) if swap else 1} offset:{(j*3+(0 if swap else a))*1024}')
        rd(0); rd(1)
        for j in range(12):
            if j+2 < 12: rd(j+2)
            A(f's_waitcnt lgkmcnt({3*min(2, 11-j)})')
            for a in range(3):
                for b in range(3):
                    x = FB+(j%3)*12+4*a; w = wf(b*12+j); c = '0' if j == 0 else None
                    A(mfma32(ACC+(a*3+b)*4, x, w, c) if swap else mfma32(ACC+(a*3+b)*4, w, x, c))
                prefetch(a, j)
    def lnT(TAB):
        A(f's_mul_i32 s43, s3, 384\ns_add_u32 s43, s43, {TAB+384}\nv_lshlrev_b32 v7, 3, v3\nv_add_u32 v7, {TAB}, v7')
        for b in range(3): A(f's_lshl_b32 s42, s{65+b}, 7\ns_add_u32 s42, s42, s43\nv_lshl_add_u32 v6, v2, 5, s42\nds_read_b128 {vr(100+8*b,4)}, v6\nds_read_b128 {vr(104+8*b,4)}, v6 offset:16\nds_read_b64 {vr(124+2*b,2)}, v7 offset:{128*b}')
    def lnT_apply(a, b):
        for i in range(4):
            r = ACC+(a*3+b)*4+i
            A(f'v_fma_f32 v{r}, -v{100+8*b+2*i}, v{124+2*a}, v{r}\nv_mul_f32 v{r}, v{r}, v{125+2*a}')
    def storesT(act, stride):
        for a in range(3):
            for b in range(3): lnT_apply(a, b)
            act(a)
            r = ACC+a*12
            for i in range(4): A(f'v_cvt_pk_bf16_f32 v{WK+4*a+i}, v{r+2*i}, v{r+2*i+1}')
            A(f'buffer_store_dwordx4 {vr(WK+4*a,4)}, v1, s[20:23], s50 offen sc1')
            if a < 2: A(f's_add_u32 s50, s50, {stride}')
            for i in range(2): A(f'v_cvt_pk_bf16_f32 v{WK+12+2*a+i}, v{r+8+2*i}, v{r+9+2*i}')
            if a == 1: half2(WK+12, 6, 's51')
            if a == 2: half1(WK+16, 's52')
    a48(OT, '')
    for b in range(3): A(f'buffer_load_dwordx2 {vr(RES+2*b,2)}, v4, s[24:27], s{74+b} offen')
    w48(WF_PT)
    A(f'v_lshlrev_b32 v8, 2, v9\ns_mul_i32 s43, s13, 768\ns_add_u32 s42, s43, {CS_QS}\nbuffer_load_dword v10, v8, s[20:23], s42 offen\ns_add_u32 s42, s43, {CS_1}\nbuffer_load_dword v12, v8, s[20:23], s42 offen')
    A(f'v_mov_b32 v11, 1.0\nv_mov_b32 v13, 1.0\nv_lshlrev_b32 v8, 3, v9\nv_add_u32 v8, {TAB3+384}, v8\ns_waitcnt vmcnt(0)\ns_cmp_eq_u32 s3, 3\ns_cbranch_scc1 kb_t\nds_write_b64 v8, v[10:11]\nds_write_b64 v8, v[12:13] offset:2048')
    A.label('kb_t')
    stamp()
    g48('p2', 3, lambda i: WK+4*i, lambda i: W25+4*i, 63, X1, ST1, lambda: ldrun(w37, 12, 80, WF_QS))
    ldrun(lambda i: w37(12+i), 12, 81, WF_QS)
    signal('s_mov_b32 s42, s46', 12)
    ldrun(lambda i: w37(24+i), 12, 82, WF_QS)
    def pf6(b, j): ld1(w6(b*12+j), 80+b, WF_1, j)
    A('s_cmp_lt_u32 s13, 6\ns_cbranch_scc1 p3_go')
    for b in range(3): ldrun(lambda i: w6(b*12+i), 12, 80+b, WF_1)
    if STAMPS: nst[0] += 0
    A('s_branch p4_start')
    A.label('p3_go')
    wait('s_mov_b32 s42, s45', 8)
    def epi3(main):
        A('s_lshr_b32 s47, s12, 3\ns_lshl_b32 s47, s47, 2\ns_and_b32 s48, s13, 1\ns_lshl_b32 s48, s48, 1\ns_add_u32 s47, s47, s48\ns_lshr_b32 s48, s3, 1\ns_add_u32 s47, s47, s48\ns_mul_i32 s47, s47, 73728')
        A(f's_lshr_b32 s48, s13, 1\ns_mul_i32 s48, s48, {KF-QF}\ns_add_u32 s47, s47, s48\ns_add_u32 s47, s47, {QF}\ns_and_b32 s48, s12, 7\ns_and_b32 s49, s3, 1')
        A('s_cmp_ge_u32 s13, 4\ns_cbranch_scc1 p3_v')
        lnT(TAB3); main(False); stamp()
        A('s_mul_i32 s48, s48, 9216\ns_add_u32 s47, s47, s48\ns_add_u32 s50, s47, s70\ns_add_u32 s51, s47, s71\ns_add_u32 s52, s51, 6144\nv_and_b32 v6, 1, v2\nv_mul_u32_u24 v6, 3072, v6\nv_add_u32 v6, v6, v23')
        storesT(lambda a: None, 3072)
        A('s_branch p3_done')
        A.label('p3_v')
        A('s_and_b32 s42, s12, 1\ns_mov_b32 s83, s42\ns_add_u32 s84, s42, 1\ns_cmp_eq_u32 s42, 1\ns_cselect_b32 s85, 0, 2')
        A(f's_mul_i32 s43, s3, 384\ns_add_u32 s43, s43, {TAB3+384}')
        for b in range(3):
            A(f's_lshl_b32 s42, s{83+b}, 10\nv_add_u32 v{13+b}, s42, v1\ns_lshl_b32 s42, s{83+b}, 7\ns_add_u32 s42, s42, {TAB3}\nv_lshl_add_u32 v6, v2, 5, s42\ns_lshl_b32 s42, s{65+b}, 7\ns_add_u32 s42, s42, s43\nv_lshl_add_u32 v7, v3, 3, s42')
            A(f'ds_read_b128 {vr(100+8*b,4)}, v6\nds_read_b128 {vr(104+8*b,4)}, v6 offset:16\nds_read_b64 {vr(124+2*b,2)}, v7')
        main(True)
        if STAMPS: nst[0] -= 1
        stamp()
        A('s_lshr_b32 s48, s48, 1\ns_mul_i32 s48, s48, 18432\ns_add_u32 s47, s47, s48\ns_mul_i32 s49, s49, 3072\ns_add_u32 s47, s47, s49\ns_mul_i32 s42, s83, 12288\ns_add_u32 s48, s47, s42\ns_lshl_b32 s42, s83, 9\ns_add_u32 s49, s47, s42\ns_add_u32 s49, s49, 6144')
        for b in range(3): A(f's_lshl_b32 s42, s{65+b}, 10\ns_add_u32 s{50+b}, s48, s42\ns_add_u32 s{53+b}, s49, s42')
        A('v_and_b32 v6, 1, v2\nv_lshl_add_u32 v6, v6, 10, v23')
        for b in range(3):
            for a in range(3):
                r = ACC+(a*3+b)*4; o = WK+4*b+2*a if a < 2 else WK+12+2*b
                for i in range(4): A(f'v_fma_f32 v{r+i}, -v{100+8*a+2*i}, v{124+2*b}, v{r+i}\nv_mul_f32 v{r+i}, v{r+i}, v{101+8*a+2*i}')
                A(f'v_cvt_pk_bf16_f32 v{o}, v{r}, v{r+1}\nv_cvt_pk_bf16_f32 v{o+1}, v{r+2}, v{r+3}')
            A(f'buffer_store_dwordx4 {vr(WK+4*b,4)}, v1, s[20:23], s{50+b} offen sc1')
            if b == 1: half2(WK+12, 6, 's53')
            if b == 2: half1(WK+16, 's55')
        A.label('p3_done')
    g192('p3', X1, ST1, TAB3, w37, pf6, epi3)
    signal(f's_lshr_b32 s42, s12, 3\ns_lshl_b32 s42, s42, 1\ns_and_b32 s43, s13, 1\ns_add_u32 s42, s42, s43\ns_lshl_b32 s42, s42, 5\ns_and_b32 s43, s12, 7\ns_mul_i32 s43, s43, 3\ns_add_u32 s42, s42, s43\ns_lshr_b32 s43, s13, 1\ns_add_u32 s42, s42, s43\ns_lshl_b32 s42, s42, 2\ns_add_u32 s42, s42, {FL+4096}')
    A.label('p4_start')
    A(f's_lshr_b32 s47, s12, 3\ns_lshl_b32 s47, s47, 2\ns_lshr_b32 s48, s13, 1\ns_add_u32 s47, s47, s48\ns_mul_i32 s49, s47, 73728')
    A(f's_and_b32 s50, s12, 7\ns_mul_i32 s50, s50, 3\ns_and_b32 s51, s13, 1\ns_add_u32 s50, s50, s51\ns_mul_i32 s50, s50, 3072\ns_add_u32 s50, s50, s49')
    A(f's_mul_i32 s52, s3, 18432\ns_add_u32 s52, s52, s49')
    A('v_lshrrev_b32 v9, 3, v3\nv_mul_u32_u24 v9, 3072, v9\nv_lshl_add_u32 v9, v2, 8, v9\nv_bfe_u32 v6, v3, 2, 1\nv_lshl_add_u32 v9, v6, 7, v9\nv_and_b32 v6, 3, v3\nv_lshl_add_u32 v9, v6, 4, v9')
    wait(f's_lshr_b32 s42, s47, 1\ns_lshl_b32 s42, s42, 7\ns_add_u32 s42, s42, {FL+4096}', 24)
    Q = 24; K = 48; S = 120; P = 24; O = 48; L = 96; ONE = 168; F = 104
    ldrun(lambda i: vr(Q+4*i, 4), 6, 50, QF, ' sc1'); ldrun(lambda i: vr(K+4*i, 4), 6, 52, KF, ' sc1')
    A(f's_add_u32 s42, s52, {KF+6144}')
    for u in range(2):
        for j in range(3): A(f'buffer_load_dwordx4 {vr(K+24+12*u+4*j,4)}, v9, s[20:23], s42 offen offset:{j*1024+u*64} sc1')
    ldrun(lambda i: vr(K+48+4*i, 4), 6, 52, KF+12288, ' sc1'); ldrun(w37, 18, 52, VF, ' sc1')
    for i in range(4): A(f'v_mov_b32 v{ONE+i}, 0x3f803f80')
    A(f's_mov_b32 s53, {hx(f2u(SC))}\ns_lshl_b32 s42, s3, 9\nv_add_u32 v8, s42, v5')
    for kt in range(6):
        A(f's_waitcnt vmcnt({18+3*(5-kt)})')
        for j in range(3):
            for a in range(2): A(mfma32(S+(a*6+kt)*4, K+(kt*3+j)*4, Q+(a*3+j)*4, '0' if j == 0 else None))
    stamp()
    w48(WF_PS)
    for a in range(2):
        b = S+a*24
        A(f'v_max3_f32 v{10+a}, v{b}, v{b+1}, v{b+2}')
        for i in range(3, 23, 2): A(f'v_max3_f32 v{10+a}, v{10+a}, v{b+i}, v{b+i+1}')
        A(f'v_max_f32 v{10+a}, v{10+a}, v{b+23}')
        red_g(A, 10+a, 6, 'v_max_f32')
        A(f'ds_write_b32 v8, v{10+a} offset:{256*a}')
    A('s_waitcnt lgkmcnt(0)\ns_barrier')
    for a in range(2):
        for w in range(4): A(f'ds_read_b32 v{K+4*a+w}, v5 offset:{512*w+256*a}')
    A('s_waitcnt lgkmcnt(0)')
    for a in range(2):
        A(f'v_max3_f32 v{10+a}, v{K+4*a}, v{K+4*a+1}, v{K+4*a+2}\nv_max_f32 v{10+a}, v{10+a}, v{K+4*a+3}\nv_mul_f32 v{10+a}, s53, v{10+a}')
    for a in range(2):
        b = S+a*24
        for i in range(24): A(f'v_fma_f32 v{b+i}, v{b+i}, s53, -v{10+a}')
        for i in range(24): A(f'v_exp_f32 v{b+i}, v{b+i}')
        A('s_nop 0')
        for i in range(12): A(f'v_cvt_pk_bf16_f32 v{P+a*12+i}, v{b+2*i}, v{b+2*i+1}')
    A('s_nop 1')
    for kp in range(3):
        A(f's_waitcnt vmcnt({9+6*(2-kp)})')
        for a in range(2):
            for dt in range(6): A(mfma32(O+(a*6+dt)*4, w37(kp*6+dt), P+(a*3+kp)*4, '0' if kp == 0 else None))
            A(mfma32(L+4*a, ONE, P+(a*3+kp)*4, '0' if kp == 0 else None))
    stamp()
    A('s_mul_i32 s42, s3, 12288\ns_add_u32 s42, s42, 4096\nv_add_u32 v6, s42, v1\ns_mul_i32 s42, s3, 3072\ns_add_u32 s42, s42, 4096\ns_lshl_b32 s43, s65, 10\ns_add_u32 s43, s43, s42\nv_add_u32 v7, s43, v1\ns_lshl_b32 s43, s67, 10\ns_add_u32 s43, s43, s42\nv_add_u32 v10, s43, v1')
    A('s_lshr_b32 s54, s3, 1\ns_lshl_b32 s42, s54, 8\nv_add_u32 v9, s42, v5\ns_nop 2')
    for i in range(12): A(f'ds_write_b128 v6, {vr(O+4*i,4)} offset:{1024*i}')
    for a in range(2): A(f'ds_write_b32 v8, v{L+4*a} offset:{2048+256*a}')
    A(f's_add_u32 s55, s14, s51\ns_add_u32 s55, s55, s54\ns_mul_i32 s55, s55, 12\ns_mul_i32 s42, s48, 3\ns_add_u32 s55, s55, s42\ns_lshl_b32 s55, s55, 10\ns_add_u32 s55, s55, {OS}')
    A('s_add_u32 s56, s55, s70\ns_add_u32 s57, s55, s71')
    A('s_waitcnt lgkmcnt(0)\ns_barrier\ns_cmp_gt_u32 s51, s54\ns_cbranch_scc1 p4_fin')
    for w in range(4): A(f'ds_read_b32 v{12+w}, v9 offset:{2048+512*w}')
    for w in range(4):
        for i in range(3): A(f'ds_read_b128 {vr(F+(w*3+i)*4,4)}, v{7 if i < 2 else 10} offset:{w*12288+(i&1)*1024}')
    A('s_waitcnt lgkmcnt(12)\nv_add_f32 v12, v12, v13\nv_add_f32 v14, v14, v15\nv_add_f32 v12, v12, v14\nv_rcp_f32 v12, v12\ns_nop 0\nv_mov_b32 v13, v12\ns_waitcnt lgkmcnt(0)')
    for i in range(6):
        A(f'v_pk_add_f32 {vr(F+2*i,2)}, {vr(F+2*i,2)}, {vr(F+12+2*i,2)}\nv_pk_add_f32 {vr(F+24+2*i,2)}, {vr(F+24+2*i,2)}, {vr(F+36+2*i,2)}')
    for i in range(6):
        A(f'v_pk_add_f32 {vr(F+2*i,2)}, {vr(F+2*i,2)}, {vr(F+24+2*i,2)}\nv_pk_mul_f32 {vr(F+2*i,2)}, {vr(F+2*i,2)}, v[12:13]\nv_cvt_pk_bf16_f32 v{P+i}, v{F+2*i}, v{F+2*i+1}')
    A(f'buffer_store_dwordx4 {vr(P,4)}, v1, s[20:23], s56 offen sc1')
    half1(P+4, 's57')
    A.label('p4_fin')
    signal('s_add_u32 s42, s46, 8192')
    wait('s_add_u32 s42, s45, 8192', 8)
    a48(OS, ' sc1')
    g48('p5', 3, lambda i: WK+4*i, lambda i: W25+4*i, 0, X2, ST2)
    signal('s_add_u32 s42, s46, 12288')
    wait('s_add_u32 s42, s45, 12288', 8)
    for b in range(3): A(f's_lshl_b32 s{77+b}, s{77+b}, 2')
    def pf7(b, j): ld1(w37(b*12+j), 77+b, WF_2, j)
    def epi6(main):
        lnT(TAB6); main(False); stamp()
        c1 = -2*0.7978845608028654*1.4426950408889634
        A(f's_mov_b32 s60, {hx(f2u(c1*0.044715))}\ns_mov_b32 s61, s60\nv_mov_b32 v10, {hx(f2u(c1))}\nv_mov_b32 v11, v10')
        A(f's_mul_i32 s47, s14, 49152\ns_mul_i32 s48, s13, 6144\ns_add_u32 s47, s47, s48\ns_lshr_b32 s48, s3, 1\ns_mul_i32 s48, s48, 3072\ns_add_u32 s47, s47, s48\ns_add_u32 s47, s47, {HID}')
        A('s_add_u32 s50, s47, s70\ns_add_u32 s51, s47, s71\ns_add_u32 s52, s51, 98304\nv_and_b32 v6, 1, v2\nv_mul_u32_u24 v6, 49152, v6\nv_add_u32 v6, v6, v23')
        def gelu(a):
            r0 = ACC+a*12; t0 = 132
            for i in range(6):
                r = r0+2*i; t = t0+2*i
                A(f'v_pk_mul_f32 {vr(t,2)}, {vr(r,2)}, {vr(r,2)}\nv_pk_fma_f32 {vr(t,2)}, {vr(t,2)}, s[60:61], v[10:11]\nv_pk_mul_f32 {vr(t,2)}, {vr(t,2)}, {vr(r,2)}')
            for i in range(12): A(f'v_exp_f32 v{t0+i}, v{t0+i}')
            for i in range(12): A(f'v_add_f32 v{t0+i}, 1.0, v{t0+i}')
            for i in range(12): A(f'v_rcp_f32 v{t0+i}, v{t0+i}')
            for i in range(6): A(f'v_pk_mul_f32 {vr(r0+2*i,2)}, {vr(r0+2*i,2)}, {vr(t0+2*i,2)}')
        storesT(gelu, 49152)
    g192('p6', X2, ST2, TAB6, w6, pf7, epi6)
    signal('s_add_u32 s42, s46, 16384')
    A('s_lshl_b32 s47, s16, 2')
    for a in range(3): A(f's_add_u32 s{32+a}, s47, {HID + a*49152}')
    wait('s_add_u32 s42, s45, 16384', 8)
    for j in range(12):
        for a in range(3): A(f'buffer_load_dwordx4 {vr(WK+(j*3+a)*4,4)}, v1, s[20:23], s{32+a} offen offset:{(j%4)*1024} sc1')
        if j % 4 == 3 and j < 11:
            for a in range(3): A(f's_add_u32 s{32+a}, s{32+a}, 4096')
    g48('p7', 12, lambda i: WK+4*i, w37, 0, 'out', None)
    if STAMPS:
        A('s_waitcnt vmcnt(0)'); stamp()
        A(f's_cmp_lg_u32 s3, 0\ns_cbranch_scc1 kb_end\ns_lshl_b32 s42, s2, 7\ns_add_u32 s42, s42, {STAMP+256*128}\ns_mov_b64 exec, 0x7fffffff\nbuffer_store_dword v22, v5, s[20:23], s42 offen')
        print('nstamps', nst[0])
    A.label('kb_end'); A('s_endpgm')
    return A.text(), 512, LDSB, 256, 256
```

```python
import sys
from common import *
from k1 import gen_k1
from g48 import gen_g48
from g96 import gen_g96
from k4 import gen_k4
ks = [("k1", gen_k1())]
from kb import gen_kb
if os.environ.get('MEGA', '1') == '1': ks = [ks[0], ('kb', gen_kb())]
nempty = int(sys.argv[2]) if len(sys.argv) > 2 else 0
for i in range(nempty): ks.append((f'e{i}', ('    s_endpgm\n', 32, 0, 256, 256)))
hdr = []
for l in open('standalone__video_videomae__vision.s.ref').read().split('\n'):
    if l.startswith('; @launch'): break
    hdr.append(l)
out = '\n'.join(hdr) + '\n'
for n, (t, vg, lds, g, b) in ks: out += f'; @launch kernel={n}_kernel grid=({g},1,1) block=({b},1,1) lds={lds}\n'
out += '.amdgcn_target "amdgcn-amd-amdhsa--gfx950"\n.text\n'
for n, (t, vg, lds, g, b) in ks: out += f'.globl {n}_kernel\n.p2align 8\n.type {n}_kernel,@function\n{n}_kernel:\n' + t
out += '.section .rodata,"a"\n'
for n, (t, vg, lds, g, b) in ks: out += kdesc(n + '_kernel', vg, acc=(256 if vg > 256 else None))
open(sys.argv[1], 'w').write(out)
```

```python
from common import *
from p1 import SC, phase1
RES, ACC, WK, W25 = 16, 24, 60, 188
RED = 36864; TAB3 = 73728; TAB6 = TAB3 + 2048; LW = TAB6 + 2048; LDSB = LW + 64
SW = int(os.environ.get('SW', '2'))
def w37(i): return ar(4*i)
def w6(i): return ar(144+4*i) if i < 28 else vr(224+4*(i-28), 4)
def gen_km():
    A = Asm(); nst = [0]
    def stamp():
        if STAMPS:
            i = nst[0]; nst[0] += 1
            A(f's_memrealtime s[100:101]\ns_waitcnt lgkmcnt(0)\nv_writelane_b32 v22, s100, {i}')
    A('s_cmp_ge_u32 s2, 256\ns_cbranch_scc1 kb_end')
    stamp()
    A('s_load_dwordx16 s[84:99], s[0:1], 0\ns_load_dwordx4 s[4:7], s[0:1], 64')
    A('v_mov_b32 v9, v0\nv_lshrrev_b32 v1, 6, v0\nv_and_b32 v0, 63, v0\ns_and_b32 s10, s2, 7\nv_readfirstlane_b32 s3, v1')
    A('s_lshr_b32 s11, s2, 3\ns_lshl_b32 s12, s10, 2\ns_and_b32 s13, s11, 3\ns_add_u32 s12, s12, s13\ns_lshr_b32 s13, s11, 2')
    A('v_lshlrev_b32 v1, 4, v0\nv_lshrrev_b32 v2, 4, v0\nv_and_b32 v3, 15, v0\nv_lshlrev_b32 v5, 2, v0')
    A('s_mul_i32 s14, s12, 3\ns_mul_i32 s15, s13, 3\ns_add_u32 s19, s14, s3')
    A('s_and_b32 s68, s13, 1\ns_and_b32 s69, s3, 1')
    for p, o in ((68, 62), (69, 65)):
        A(f's_mov_b32 s{o}, s{p}\ns_add_u32 s{o+1}, s{p}, 1\ns_cmp_eq_u32 s{p}, 1\ns_cselect_b32 s{o+2}, 0, 2')
    A('s_lshr_b32 s42, s13, 1\ns_mul_i32 s42, s42, 3\ns_mul_i32 s38, s19, 12\ns_add_u32 s38, s38, s42\ns_lshl_b32 s38, s38, 10\ns_lshl_b32 s42, s68, 9\ns_add_u32 s39, s38, s42\ns_add_u32 s39, s39, 1024\ns_lshl_b32 s42, s68, 11\ns_add_u32 s38, s38, s42')
    A('s_lshl_b32 s70, s69, 11\ns_lshl_b32 s71, s69, 9\ns_add_u32 s71, s71, 1024\ns_mov_b32 s72, 0xffff\ns_mov_b32 s73, 0xffff')
    A('v_lshrrev_b32 v23, 1, v2\nv_lshl_add_u32 v23, v23, 4, v3\nv_lshlrev_b32 v23, 4, v23')
    A('v_mul_u32_u24 v4, 768, v3\nv_lshl_add_u32 v4, v2, 3, v4\ns_mul_i32 s41, s19, 12288\ns_lshl_b32 s42, s15, 5\ns_add_u32 s41, s41, s42')
    for b in range(3): A(f's_lshl_b32 s42, s{62+b}, 5\ns_add_u32 s{74+b}, s41, s42')
    A('s_mul_i32 s16, s14, 12288\ns_mul_i32 s17, s3, 3072\ns_add_u32 s16, s16, s17')
    A('s_mul_i32 s18, s15, 12288\ns_add_u32 s18, s18, s17')
    A('s_lshl_b32 s44, s13, 2\ns_add_u32 s44, s44, s3\ns_mul_i32 s44, s44, 36864')
    for b in range(3): A(f's_mul_i32 s42, s{62+b}, 12288\ns_add_u32 s{77+b}, s18, s42\ns_mul_i32 s42, s{65+b}, 12288\ns_add_u32 s{80+b}, s44, s42')
    A(f's_lshl_b32 s45, s12, 7\ns_add_u32 s45, s45, {FL}\ns_lshl_b32 s46, s13, 2\ns_add_u32 s46, s46, s45')
    A('s_waitcnt lgkmcnt(0)')
    A.srd(20, 6, WS_USED); A.srd(24, 84, 1536*768); A.srd(28, 98, 1536*768); A.srd(8, 4, 256)
    def ldrun(dst, n, base, const, sc=''):
        for i in range(n):
            if i % 4 == 0: A(f's_add_u32 s42, s{base}, {const + i*1024}')
            A(f'buffer_load_dwordx4 {dst(i)}, v1, s[20:23], s42 offen offset:{(i%4)*1024}{sc}')
    def ld1(dst, base, const, i, sc=''):
        A(f's_add_u32 s42, s{base}, {const + i*1024}\nbuffer_load_dwordx4 {dst}, v1, s[20:23], s42 offen{sc}')
    def half1(d, soff):
        A(f'v_mov_b32 v{d+2}, v{d}\nv_mov_b32 v{d+3}, v{d+1}\ns_nop 1\nv_permlane16_swap_b32 v{d}, v{d+2}\nv_permlane16_swap_b32 v{d+1}, v{d+3}')
        A(f's_mov_b64 exec, s[72:73]\nbuffer_store_dwordx4 {vr(d,4)}, v23, s[20:23], {soff} offen sc1\ns_mov_b64 exec, -1')
    def half2(d, va, soff):
        A(f's_nop 1\nv_permlane16_swap_b32 v{d}, v{d+2}\nv_permlane16_swap_b32 v{d+1}, v{d+3}\nbuffer_store_dwordx4 {vr(d,4)}, v{va}, s[20:23], {soff} offen sc1')
    def signal(soff_expr, n=0, rep=1, sh=8):
        A(f's_waitcnt vmcnt({n})\ns_barrier')
        stamp()
        l = f'kb_s{nst[0]}_{len(A.l)}'
        A(f's_cmp_lg_u32 s3, 0\ns_cbranch_scc1 {l}\n{soff_expr}\ns_mov_b64 exec, {(1<<rep)-1}\nv_mov_b32 v6, 1\nv_lshlrev_b32 v7, {sh}, v0\nbuffer_store_dword v6, v7, s[20:23], s42 offen sc1\ns_mov_b64 exec, -1')
        A.label(l)
    def wait(soff_expr, n, wv=0, srd=20, slp=0, bar=True, val='1'):
        l = f'kb_w{len(A.l)}'
        A(f's_cmp_lg_u32 s3, {wv}\ns_cbranch_scc1 {l}_d\n{soff_expr}\ns_mov_b32 s43, 0x40000\ns_mov_b32 exec_lo, {hx((1<<n)-1)}\ns_mov_b32 exec_hi, {hx(((1<<n)-1)>>32)}')
        A.label(l)
        A(f'buffer_load_dword v6, v5, s[{srd}:{srd+3}], s42 offen sc1\ns_sub_u32 s43, s43, 1\ns_cbranch_scc1 {l}_x\ns_waitcnt vmcnt(0)\nv_cmp_ne_u32 vcc, {val}, v6\n' + (f's_cbranch_vccz {l}_x\ns_sleep {slp}\ns_branch {l}' if slp else f's_cbranch_vccnz {l}'))
        A.label(l + '_x'); A('s_mov_b64 exec, -1')
        A.label(l + '_d')
        if bar: A('s_barrier'); stamp()
    def g48(name, KW, a_frag, wf, nafter, dst, st, mid=None):
        for j in range(KW):
            A(f's_waitcnt vmcnt({min(63, nafter + 3*(KW-1-j))})')
            for a in range(3):
                for b in range(3): A(mfma32(ACC+(a*3+b)*4, wf(b*KW+j), a_frag(j*3+a), '0' if j == 0 else None))
        stamp()
        if mid: mid()
        A(f's_mul_i32 s42, s3, 9216\ns_add_u32 s42, s42, {RED}\nv_add_u32 v6, s42, v1\ns_mul_i32 s42, s3, 3072\ns_add_u32 s42, s42, {RED}\nv_add_u32 v7, s42, v1\ns_nop 2')
        for i in range(9): A(f'ds_write_b128 v6, {vr(ACC+4*i,4)} offset:{1024*i}')
        A(f's_waitcnt lgkmcnt(0)\ns_barrier\ns_cmp_eq_u32 s3, 3\ns_cbranch_scc1 {name}_fin')
        for w in range(4):
            for b in range(3): A(f'ds_read_b128 {vr(WK+(w*3+b)*4,4)}, v7 offset:{w*9216+b*1024}')
        for i in range(6): A(f'v_lshlrev_b32 v{ACC+2*i}, 16, v{RES+i}\nv_and_b32 v{ACC+2*i+1}, 0xffff0000, v{RES+i}')
        for w in range(4):
            A(f's_waitcnt lgkmcnt({3*(3-w)})')
            for i in range(6): A(f'v_pk_add_f32 {vr(ACC+2*i,2)}, {vr(ACC+2*i,2)}, {vr(WK+w*12+2*i,2)}')
        for i in range(6): A(f'v_cvt_pk_bf16_f32 v{RES+i}, v{ACC+2*i}, v{ACC+2*i+1}')
        if dst == 'out':
            for b in range(3): A(f'buffer_store_dwordx2 {vr(RES+2*b,2)}, v4, s[28:31], s{74+b} offen')
        else:
            A(f's_add_u32 s42, s38, {dst}\nbuffer_store_dwordx4 {vr(RES,4)}, v1, s[20:23], s42 offen sc1\nv_mov_b32 v12, v{RES+4}\nv_mov_b32 v13, v{RES+5}\ns_add_u32 s42, s39, {dst}')
            half1(12, 's42')
        if st is not None:
            T = WK
            for i in range(6): A(f'v_lshlrev_b32 v{ACC+2*i}, 16, v{RES+i}\nv_and_b32 v{ACC+2*i+1}, 0xffff0000, v{RES+i}')
            A(f'v_pk_add_f32 {vr(T,2)}, {vr(ACC,2)}, {vr(ACC+2,2)}\nv_pk_mul_f32 {vr(T+2,2)}, {vr(ACC,2)}, {vr(ACC,2)}')
            for i in range(2, 6): A(f'v_pk_add_f32 {vr(T,2)}, {vr(T,2)}, {vr(ACC+2*i,2)}')
            for i in range(1, 6): A(f'v_pk_fma_f32 {vr(T+2,2)}, {vr(ACC+2*i,2)}, {vr(ACC+2*i,2)}, {vr(T+2,2)}')
            A(f'v_add_f32 v{T}, v{T}, v{T+1}\nv_add_f32 v{T+1}, v{T+2}, v{T+3}')
            red_g(A, T, T+4, 'v_add_f32'); red_g(A, T+1, T+4, 'v_add_f32')
            A(f'v_lshlrev_b32 v6, 6, v0\ns_lshl_b32 s42, s19, 10\ns_lshl_b32 s43, s13, 3\ns_add_u32 s42, s42, s43\ns_add_u32 s42, s42, {st}')
            A(f's_mov_b64 exec, 0xffff\nbuffer_store_dwordx2 {vr(T,2)}, v6, s[20:23], s42 offen sc1\ns_mov_b64 exec, -1')
        A.label(f'{name}_fin')
    def a48(off, sc):
        for a in range(3): A(f's_add_u32 s{32+a}, s16, {off + a*12288}')
        for j in range(3):
            for a in range(3): A(f'buffer_load_dwordx4 {vr(WK+(j*3+a)*4,4)}, v1, s[20:23], s{32+a} offen offset:{j*1024}{sc}')
    def w48(off):
        for b in range(3): ldrun(lambda i: vr(W25+(b*3+i)*4, 4), 3, 77+b, off)
    def g192(name, Xoff, ST, TAB, wf, prefetch, epi):
        A(f's_min_u32 s43, s3, 2\ns_add_u32 s42, s14, s43\ns_lshl_b32 s42, s42, 10\ns_add_u32 s42, s42, {ST}\nv_lshlrev_b32 v6, 6, v3\nv_lshl_add_u32 v6, v2, 4, v6')
        A('buffer_load_dwordx4 v[12:15], v6, s[20:23], s42 offen sc1')
        a48(Xoff, ' sc1')
        npf = 0
        A(f's_mul_i32 s42, s3, 9216\nv_add_u32 v6, s42, v1\ns_lshl_b32 s43, s43, 7\ns_add_u32 s43, s43, {TAB}\nv_lshl_add_u32 v7, v3, 3, s43')
        A(f's_waitcnt vmcnt({npf+9})\nv_pk_add_f32 v[12:13], v[12:13], v[14:15]')
        red_g(A, 12, 14, 'v_add_f32'); red_g(A, 13, 14, 'v_add_f32')
        A(f'v_mul_f32 v12, {hx(f2u(1/384))}, v12\nv_mul_f32 v13, {hx(f2u(1/384))}, v13\nv_fma_f32 v13, -v12, v12, v13\nv_max_f32 v13, 0, v13\nv_add_f32 v13, {hx(f2u(1e-5))}, v13\nv_rsq_f32 v13, v13\ns_nop 0\nds_write_b64 v7, v[12:13]')
        for i in range(9): A(f's_waitcnt vmcnt({npf+8-i})\nds_write_b128 v6, {vr(WK+4*i,4)} offset:{1024*i}')
        A('s_waitcnt lgkmcnt(0)\ns_barrier')
        stamp()
        epi(lambda swap: main192(wf, swap, prefetch))
    def main192(wf, swap, prefetch):
        FB = WK
        def rd(j):
            for a in range(3): A(f'ds_read_b128 {vr(FB+(j%3)*12+4*a,4)}, v{(13+a) if swap else 1} offset:{(j*3+(0 if swap else a))*1024}')
        rd(0); rd(1)
        for j in range(12):
            if j+2 < 12: rd(j+2)
            A(f's_waitcnt lgkmcnt({3*min(2, 11-j)})')
            for a in range(3):
                for b in range(3):
                    x = FB+(j%3)*12+4*a; w = wf(b*12+j); c = '0' if j == 0 else None
                    A(mfma32(ACC+(a*3+b)*4, x, w, c) if swap else mfma32(ACC+(a*3+b)*4, w, x, c))
                prefetch(a, j)
    def lnT(TAB):
        A(f's_mul_i32 s43, s3, 384\ns_add_u32 s43, s43, {TAB+384}\nv_lshlrev_b32 v7, 3, v3\nv_add_u32 v7, {TAB}, v7')
        for b in range(3): A(f's_lshl_b32 s42, s{65+b}, 7\ns_add_u32 s42, s42, s43\nv_lshl_add_u32 v6, v2, 5, s42\nds_read_b128 {vr(100+8*b,4)}, v6\nds_read_b128 {vr(104+8*b,4)}, v6 offset:16\nds_read_b64 {vr(124+2*b,2)}, v7 offset:{128*b}')
    def lnT_apply(a, b):
        for i in range(4):
            r = ACC+(a*3+b)*4+i
            A(f'v_fma_f32 v{r}, -v{100+8*b+2*i}, v{124+2*a}, v{r}\nv_mul_f32 v{r}, v{r}, v{125+2*a}')
    def storesT(act, stride):
        for a in range(3):
            for b in range(3): lnT_apply(a, b)
            act(a)
            r = ACC+a*12
            for i in range(4): A(f'v_cvt_pk_bf16_f32 v{WK+4*a+i}, v{r+2*i}, v{r+2*i+1}')
            A(f'buffer_store_dwordx4 {vr(WK+4*a,4)}, v1, s[20:23], s50 offen sc1')
            if a < 2: A(f's_add_u32 s50, s50, {stride}')
            for i in range(2): A(f'v_cvt_pk_bf16_f32 v{WK+12+2*a+i}, v{r+8+2*i}, v{r+9+2*i}')
            if a == 1: half2(WK+12, 6, 's51')
            if a == 2: half1(WK+16, 's52')
    phase1(A, stamp, wait, nst, LW)
    A.label('p2_pre')
    A(f'v_lshlrev_b32 v8, 2, v9\ns_mul_i32 s43, s13, 768\ns_add_u32 s42, s43, {CS_QS}\nbuffer_load_dword v10, v8, s[20:23], s42 offen\ns_add_u32 s42, s43, {CS_1}\nbuffer_load_dword v12, v8, s[20:23], s42 offen')
    for b in range(3): A(f'buffer_load_dwordx2 {vr(RES+2*b,2)}, v4, s[24:27], s{74+b} offen')
    w48(WF_PT)
    ldrun(w37, 12, 80, WF_QS)
    A(f'v_mov_b32 v11, 1.0\nv_mov_b32 v13, 1.0\nv_lshlrev_b32 v8, 3, v9\nv_add_u32 v8, {TAB3+384}, v8\ns_cmp_eq_u32 s3, 3\ns_cbranch_scc1 kb_t\ns_waitcnt vmcnt(24)\nds_write_b64 v8, v[10:11]\nds_write_b64 v8, v[12:13] offset:2048')
    A.label('kb_t')
    wait('s_add_u32 s42, s45, 4096', 24, 3)
    a48(OT, ' sc1')
    g48('p2', 3, lambda i: WK+4*i, lambda i: W25+4*i, 0, X1, ST1, lambda: ldrun(lambda i: w37(12+i), 12, 81, WF_QS))
    signal('s_mov_b32 s42, s46', 0)
    ldrun(lambda i: w37(24+i), 12, 82, WF_QS)
    def pf6(b, j): ld1(w6(b*12+j), 80+b, WF_1, j)
    A('s_cmp_lt_u32 s13, 6\ns_cbranch_scc1 p3_go')
    for b in range(3): ldrun(lambda i: w6(b*12+i), 12, 80+b, WF_1)
    if STAMPS: nst[0] += 0
    A('s_branch p4_start')
    A.label('p3_go')
    wait('s_mov_b32 s42, s45', 8)
    def epi3(main):
        A('s_lshr_b32 s47, s12, 3\ns_lshl_b32 s47, s47, 2\ns_and_b32 s48, s13, 1\ns_lshl_b32 s48, s48, 1\ns_add_u32 s47, s47, s48\ns_lshr_b32 s48, s3, 1\ns_add_u32 s47, s47, s48\ns_mul_i32 s47, s47, 73728')
        A(f's_lshr_b32 s48, s13, 1\ns_mul_i32 s48, s48, {KF-QF}\ns_add_u32 s47, s47, s48\ns_add_u32 s47, s47, {QF}\ns_and_b32 s48, s12, 7\ns_and_b32 s49, s3, 1')
        A('s_cmp_ge_u32 s13, 4\ns_cbranch_scc1 p3_v')
        lnT(TAB3); main(False); stamp()
        A('s_mul_i32 s48, s48, 9216\ns_add_u32 s47, s47, s48\ns_add_u32 s50, s47, s70\ns_add_u32 s51, s47, s71\ns_add_u32 s52, s51, 6144\nv_and_b32 v6, 1, v2\nv_mul_u32_u24 v6, 3072, v6\nv_add_u32 v6, v6, v23')
        storesT(lambda a: None, 3072)
        A('s_branch p3_done')
        A.label('p3_v')
        A('s_and_b32 s42, s12, 1\ns_mov_b32 s83, s42\ns_add_u32 s84, s42, 1\ns_cmp_eq_u32 s42, 1\ns_cselect_b32 s85, 0, 2')
        A(f's_mul_i32 s43, s3, 384\ns_add_u32 s43, s43, {TAB3+384}')
        for b in range(3):
            A(f's_lshl_b32 s42, s{83+b}, 10\nv_add_u32 v{13+b}, s42, v1\ns_lshl_b32 s42, s{83+b}, 7\ns_add_u32 s42, s42, {TAB3}\nv_lshl_add_u32 v6, v2, 5, s42\ns_lshl_b32 s42, s{65+b}, 7\ns_add_u32 s42, s42, s43\nv_lshl_add_u32 v7, v3, 3, s42')
            A(f'ds_read_b128 {vr(100+8*b,4)}, v6\nds_read_b128 {vr(104+8*b,4)}, v6 offset:16\nds_read_b64 {vr(124+2*b,2)}, v7')
        main(True)
        if STAMPS: nst[0] -= 1
        stamp()
        A('s_lshr_b32 s48, s48, 1\ns_mul_i32 s48, s48, 18432\ns_add_u32 s47, s47, s48\ns_mul_i32 s49, s49, 3072\ns_add_u32 s47, s47, s49\ns_mul_i32 s42, s83, 12288\ns_add_u32 s48, s47, s42\ns_lshl_b32 s42, s83, 9\ns_add_u32 s49, s47, s42\ns_add_u32 s49, s49, 6144')
        for b in range(3): A(f's_lshl_b32 s42, s{65+b}, 10\ns_add_u32 s{50+b}, s48, s42\ns_add_u32 s{53+b}, s49, s42')
        A('v_and_b32 v6, 1, v2\nv_lshl_add_u32 v6, v6, 10, v23')
        for b in range(3):
            for a in range(3):
                r = ACC+(a*3+b)*4; o = WK+4*b+2*a if a < 2 else WK+12+2*b
                for i in range(4): A(f'v_fma_f32 v{r+i}, -v{100+8*a+2*i}, v{124+2*b}, v{r+i}\nv_mul_f32 v{r+i}, v{r+i}, v{101+8*a+2*i}')
                A(f'v_cvt_pk_bf16_f32 v{o}, v{r}, v{r+1}\nv_cvt_pk_bf16_f32 v{o+1}, v{r+2}, v{r+3}')
            A(f'buffer_store_dwordx4 {vr(WK+4*b,4)}, v1, s[20:23], s{50+b} offen sc1')
            if b == 1: half2(WK+12, 6, 's53')
            if b == 2: half1(WK+16, 's55')
        A.label('p3_done')
    g192('p3', X1, ST1, TAB3, w37, pf6, epi3)
    signal(f's_lshr_b32 s42, s12, 3\ns_lshl_b32 s42, s42, 4\ns_and_b32 s43, s13, 1\ns_add_u32 s42, s42, s43\ns_lshl_b32 s42, s42, 5\ns_and_b32 s43, s12, 7\ns_mul_i32 s43, s43, 3\ns_add_u32 s42, s42, s43\ns_lshr_b32 s43, s13, 1\ns_add_u32 s42, s42, s43\ns_lshl_b32 s42, s42, 2\ns_add_u32 s42, s42, {F3}', 0, 8)
    A.label('p4_start')
    A(f's_lshr_b32 s47, s12, 3\ns_lshl_b32 s47, s47, 2\ns_lshr_b32 s48, s13, 1\ns_add_u32 s47, s47, s48\ns_mul_i32 s49, s47, 73728')
    A(f's_and_b32 s50, s12, 7\ns_mul_i32 s50, s50, 3\ns_and_b32 s51, s13, 1\ns_add_u32 s50, s50, s51\ns_mul_i32 s50, s50, 3072\ns_add_u32 s50, s50, s49')
    A(f's_mul_i32 s52, s3, 18432\ns_add_u32 s52, s52, s49')
    A('v_lshrrev_b32 v9, 3, v3\nv_mul_u32_u24 v9, 3072, v9\nv_lshl_add_u32 v9, v2, 8, v9\nv_bfe_u32 v6, v3, 2, 1\nv_lshl_add_u32 v9, v6, 7, v9\nv_and_b32 v6, 3, v3\nv_lshl_add_u32 v9, v6, 4, v9')
    wait(f's_lshl_b32 s42, s12, 1\ns_lshr_b32 s43, s13, 2\ns_add_u32 s42, s42, s43\ns_lshl_b32 s42, s42, 7\ns_add_u32 s42, s42, {F3}', 24)
    Q = 24; K = 48; S = 120; P = 24; O = 48; L = 96; ONE = 168; F = 104
    ldrun(lambda i: vr(Q+4*i, 4), 6, 50, QF, ' sc1'); ldrun(lambda i: vr(K+4*i, 4), 6, 52, KF, ' sc1')
    A(f's_add_u32 s42, s52, {KF+6144}')
    for u in range(2):
        for j in range(3): A(f'buffer_load_dwordx4 {vr(K+24+12*u+4*j,4)}, v9, s[20:23], s42 offen offset:{j*1024+u*64} sc1')
    ldrun(lambda i: vr(K+48+4*i, 4), 6, 52, KF+12288, ' sc1'); ldrun(w37, 18, 52, VF, ' sc1')
    for i in range(4): A(f'v_mov_b32 v{ONE+i}, 0x3f803f80')
    A(f's_mov_b32 s53, {hx(f2u(SC))}\ns_lshl_b32 s42, s3, 9\nv_add_u32 v8, s42, v5')
    for kt in range(6):
        A(f's_waitcnt vmcnt({18+3*(5-kt)})')
        for j in range(3):
            for a in range(2): A(mfma32(S+(a*6+kt)*4, K+(kt*3+j)*4, Q+(a*3+j)*4, '0' if j == 0 else None))
    stamp()
    w48(WF_PS)
    for a in range(2):
        b = S+a*24
        A(f'v_max3_f32 v{10+a}, v{b}, v{b+1}, v{b+2}')
        for i in range(3, 23, 2): A(f'v_max3_f32 v{10+a}, v{10+a}, v{b+i}, v{b+i+1}')
        A(f'v_max_f32 v{10+a}, v{10+a}, v{b+23}')
        red_g(A, 10+a, 6, 'v_max_f32')
        A(f'ds_write_b32 v8, v{10+a} offset:{256*a}')
    A('s_waitcnt lgkmcnt(0)\ns_barrier')
    for a in range(2):
        for w in range(4): A(f'ds_read_b32 v{K+4*a+w}, v5 offset:{512*w+256*a}')
    A('s_waitcnt lgkmcnt(0)')
    for a in range(2):
        A(f'v_max3_f32 v{10+a}, v{K+4*a}, v{K+4*a+1}, v{K+4*a+2}\nv_max_f32 v{10+a}, v{10+a}, v{K+4*a+3}\nv_mul_f32 v{10+a}, s53, v{10+a}')
    for a in range(2):
        b = S+a*24
        for i in range(24): A(f'v_fma_f32 v{b+i}, v{b+i}, s53, -v{10+a}')
        for i in range(24): A(f'v_exp_f32 v{b+i}, v{b+i}')
        A('s_nop 0')
        for i in range(12): A(f'v_cvt_pk_bf16_f32 v{P+a*12+i}, v{b+2*i}, v{b+2*i+1}')
    A('s_nop 1')
    for kp in range(3):
        A(f's_waitcnt vmcnt({9+6*(2-kp)})')
        for a in range(2):
            for dt in range(6): A(mfma32(O+(a*6+dt)*4, w37(kp*6+dt), P+(a*3+kp)*4, '0' if kp == 0 else None))
            A(mfma32(L+4*a, ONE, P+(a*3+kp)*4, '0' if kp == 0 else None))
    stamp()
    A('s_mul_i32 s42, s3, 12288\ns_add_u32 s42, s42, 4096\nv_add_u32 v6, s42, v1\ns_mul_i32 s42, s3, 3072\ns_add_u32 s42, s42, 4096\ns_lshl_b32 s43, s65, 10\ns_add_u32 s43, s43, s42\nv_add_u32 v7, s43, v1\ns_lshl_b32 s43, s67, 10\ns_add_u32 s43, s43, s42\nv_add_u32 v10, s43, v1')
    A('s_lshr_b32 s54, s3, 1\ns_lshl_b32 s42, s54, 8\nv_add_u32 v9, s42, v5\ns_nop 2')
    for i in range(12): A(f'ds_write_b128 v6, {vr(O+4*i,4)} offset:{1024*i}')
    for a in range(2): A(f'ds_write_b32 v8, v{L+4*a} offset:{2048+256*a}')
    A(f's_add_u32 s55, s14, s51\ns_add_u32 s55, s55, s54\ns_mul_i32 s55, s55, 12\ns_mul_i32 s42, s48, 3\ns_add_u32 s55, s55, s42\ns_lshl_b32 s55, s55, 10\ns_add_u32 s55, s55, {OS}')
    A('s_add_u32 s56, s55, s70\ns_add_u32 s57, s55, s71')
    A('s_waitcnt lgkmcnt(0)\ns_barrier\ns_cmp_gt_u32 s51, s54\ns_cbranch_scc1 p4_fin')
    for w in range(4): A(f'ds_read_b32 v{12+w}, v9 offset:{2048+512*w}')
    for w in range(4):
        for i in range(3): A(f'ds_read_b128 {vr(F+(w*3+i)*4,4)}, v{7 if i < 2 else 10} offset:{w*12288+(i&1)*1024}')
    A('s_waitcnt lgkmcnt(12)\nv_add_f32 v12, v12, v13\nv_add_f32 v14, v14, v15\nv_add_f32 v12, v12, v14\nv_rcp_f32 v12, v12\ns_nop 0\nv_mov_b32 v13, v12\ns_waitcnt lgkmcnt(0)')
    for i in range(6):
        A(f'v_pk_add_f32 {vr(F+2*i,2)}, {vr(F+2*i,2)}, {vr(F+12+2*i,2)}\nv_pk_add_f32 {vr(F+24+2*i,2)}, {vr(F+24+2*i,2)}, {vr(F+36+2*i,2)}')
    for i in range(6):
        A(f'v_pk_add_f32 {vr(F+2*i,2)}, {vr(F+2*i,2)}, {vr(F+24+2*i,2)}\nv_pk_mul_f32 {vr(F+2*i,2)}, {vr(F+2*i,2)}, v[12:13]\nv_cvt_pk_bf16_f32 v{P+i}, v{F+2*i}, v{F+2*i+1}')
    A(f'buffer_store_dwordx4 {vr(P,4)}, v1, s[20:23], s56 offen sc1')
    half1(P+4, 's57')
    A.label('p4_fin')
    signal('s_add_u32 s42, s46, 8192')
    wait('s_add_u32 s42, s45, 8192', 8)
    a48(OS, ' sc1')
    g48('p5', 3, lambda i: WK+4*i, lambda i: W25+4*i, 0, X2, ST2)
    signal('s_add_u32 s42, s46, 12288')
    wait('s_add_u32 s42, s45, 12288', 8)
    for b in range(3): A(f's_lshl_b32 s{77+b}, s{77+b}, 2')
    def pf7(b, j): ld1(w37(b*12+j), 77+b, WF_2, j)
    def epi6(main):
        lnT(TAB6); main(False); stamp()
        c1 = -2*0.7978845608028654*1.4426950408889634
        A(f's_mov_b32 s60, {hx(f2u(c1*0.044715))}\ns_mov_b32 s61, s60\nv_mov_b32 v10, {hx(f2u(c1))}\nv_mov_b32 v11, v10')
        A(f's_mul_i32 s47, s14, 49152\ns_mul_i32 s48, s13, 6144\ns_add_u32 s47, s47, s48\ns_lshr_b32 s48, s3, 1\ns_mul_i32 s48, s48, 3072\ns_add_u32 s47, s47, s48\ns_add_u32 s47, s47, {HID}')
        A('s_add_u32 s50, s47, s70\ns_add_u32 s51, s47, s71\ns_add_u32 s52, s51, 98304\nv_and_b32 v6, 1, v2\nv_mul_u32_u24 v6, 49152, v6\nv_add_u32 v6, v6, v23')
        def gelu(a):
            r0 = ACC+a*12; t0 = 132
            for i in range(6):
                r = r0+2*i; t = t0+2*i
                A(f'v_pk_mul_f32 {vr(t,2)}, {vr(r,2)}, {vr(r,2)}\nv_pk_fma_f32 {vr(t,2)}, {vr(t,2)}, s[60:61], v[10:11]\nv_pk_mul_f32 {vr(t,2)}, {vr(t,2)}, {vr(r,2)}')
            for i in range(12): A(f'v_exp_f32 v{t0+i}, v{t0+i}')
            for i in range(12): A(f'v_add_f32 v{t0+i}, 1.0, v{t0+i}')
            for i in range(12): A(f'v_rcp_f32 v{t0+i}, v{t0+i}')
            for i in range(6): A(f'v_pk_mul_f32 {vr(r0+2*i,2)}, {vr(r0+2*i,2)}, {vr(t0+2*i,2)}')
        storesT(gelu, 49152)
    g192('p6', X2, ST2, TAB6, w6, pf7, epi6)
    signal('s_add_u32 s42, s46, 16384')
    A('s_lshl_b32 s47, s16, 2')
    for a in range(3): A(f's_add_u32 s{32+a}, s47, {HID + a*49152}')
    wait('s_add_u32 s42, s45, 16384', 8)
    for j in range(12):
        for a in range(3): A(f'buffer_load_dwordx4 {vr(WK+(j*3+a)*4,4)}, v1, s[20:23], s{32+a} offen offset:{(j%4)*1024} sc1')
        if j % 4 == 3 and j < 11:
            for a in range(3): A(f's_add_u32 s{32+a}, s{32+a}, 4096')
    g48('p7', 12, lambda i: WK+4*i, w37, 0, 'out', None)
    if STAMPS:
        A('s_waitcnt vmcnt(0)'); stamp()
        A(f's_cmp_lg_u32 s3, {SW}\ns_cbranch_scc1 kb_end\ns_lshl_b32 s42, s2, 7\ns_add_u32 s42, s42, {STAMP+256*128}\ns_mov_b64 exec, 0x7fffffff\nbuffer_store_dword v22, v5, s[20:23], s42 offen')
        print('nstamps', nst[0])
    A.label('kb_end'); A('s_endpgm')
    return A.text(), 512, LDSB, 256, 256
```

```python
from common import *
LOG2E = 1.4426950408889634
SC = 96 ** -0.5 * LOG2E
NH = 52
def phase1(A, stamp, wait, nst, LW):
    SLP = int(os.environ.get('SLP', '8'))
    A(f's_and_b32 s55, s2, 1\ns_lshl_b32 s55, s55, 7\nv_mov_b32 v18, {LW}\nv_mov_b32 v24, 0\nds_write_b32 v18, v24\ns_sub_u32 s36, s2, 192')
    A('s_cmp_ge_u32 s2, 192\ns_cbranch_scc1 p1_helper')
    NS = 5; XR = 24; XU = 48; PB = 24; ACC = 144; XF = 72; RG = 96; QK = 24576
    A.srd(56, 86, 384*2304)
    A('s_and_b32 s36, s2, 7\ns_lshr_b32 s37, s36, 1\ns_and_b32 s36, s36, 1\ns_lshr_b32 s35, s2, 3\ns_lshl_b32 s35, s35, 1\ns_add_u32 s35, s35, s36\ns_lshl_b32 s36, s35, 3')
    A('v_lshrrev_b32 v6, 3, v0\ns_lshl_b32 s42, s3, 3\nv_add_u32 v6, s42, v6')
    A('v_and_b32 v7, 3, v6\nv_mul_u32_u24 v7, 384, v7\nv_lshrrev_b32 v8, 2, v6\nv_add3_u32 v7, v7, v8, s36\nv_mul_u32_u24 v7, 768, v7')
    A('v_and_b32 v8, 7, v0\nv_lshl_add_u32 v7, v8, 4, v7')
    for i in range(6): A(f'buffer_load_dwordx4 {vr(XR+4*i,4)}, v7, s[24:27], 0 offen offset:{128*i}')
    A('v_mul_u32_u24 v10, 18432, v2\nv_mul_u32_u24 v11, 12, v3\nv_add_u32 v10, v10, v11\nv_add_u32 v11, 4608, v10\nv_add_u32 v12, 9216, v10\nv_add_u32 v13, 13824, v10')
    A('s_mul_i32 s47, s37, 192\ns_mul_i32 s48, s3, 768\ns_add_u32 s47, s47, s48\ns_lshr_b32 s33, s2, 3\ns_cmp_ge_u32 s33, 12\ns_cselect_b32 s34, 12, 0\ns_sub_u32 s33, s33, s34\ns_lshl_b32 s34, s33, 10\ns_mul_i32 s33, s33, 73728\ns_mov_b32 s60, 0x05040100\ns_mov_b32 s61, 0x07060302')
    def wld(j, e):
        if e == 0: A('s_add_u32 s48, s47, s33\ns_add_u32 s33, s33, 73728\ns_cmp_eq_u32 s33, 884736\ns_cselect_b32 s33, 0, s33')
        A(f'buffer_load_dwordx3 {vr(RG+(j%NS)*32+4*e,3)}, v{10+e//2}, s[56:59], s48 offen offset:{(e&1)*2304}')
    A('v_lshrrev_b32 v7, 4, v6\nv_mul_u32_u24 v7, 12288, v7\nv_lshrrev_b32 v14, 2, v8\nv_lshl_add_u32 v7, v14, 10, v7')
    A('v_and_b32 v14, 3, v8\nv_lshl_add_u32 v7, v14, 8, v7\nv_and_b32 v14, 15, v6\nv_lshl_add_u32 v7, v14, 4, v7')
    def red8(x):
        return [f's_nop 1\nv_add_f32_dpp v{x}, v{x}, v{x} {m} row_mask:0xf bank_mask:0xf' for m in ('quad_perm:[1,0,3,2]', 'quad_perm:[2,3,0,1]', 'row_half_mirror')]
    ln = []
    for i in range(24): ln.append(f'v_lshlrev_b32 v{XU+2*i}, 16, v{XR+i}\nv_and_b32 v{XU+1+2*i}, 0xffff0000, v{XR+i}')
    ln.append(f'v_pk_add_f32 v[14:15], {vr(XU,2)}, {vr(XU+2,2)}\nv_pk_add_f32 v[16:17], {vr(XU+4,2)}, {vr(XU+6,2)}')
    for i in range(4, 24): ln.append(f'v_pk_add_f32 {vr(14+2*(i&1),2)}, {vr(14+2*(i&1),2)}, {vr(XU+2*i,2)}')
    ln.append('v_pk_add_f32 v[14:15], v[14:15], v[16:17]\nv_add_f32 v14, v14, v15'); ln += red8(14)
    ln.append(f'v_mul_f32 v14, {hx(f2u(-1.0/384))}, v14\nv_mov_b32 v15, v14')
    for i in range(24): ln.append(f'v_pk_add_f32 {vr(XU+2*i,2)}, {vr(XU+2*i,2)}, v[14:15]')
    ln.append(f'v_pk_mul_f32 v[14:15], {vr(XU,2)}, {vr(XU,2)}\nv_pk_mul_f32 v[16:17], {vr(XU+2,2)}, {vr(XU+2,2)}')
    for i in range(2, 24): ln.append(f'v_pk_fma_f32 {vr(14+2*(i&1),2)}, {vr(XU+2*i,2)}, {vr(XU+2*i,2)}, {vr(14+2*(i&1),2)}')
    ln.append('v_pk_add_f32 v[14:15], v[14:15], v[16:17]\nv_add_f32 v14, v14, v15'); ln += red8(14)
    ln.append(f'v_mov_b32 v15, {hx(f2u(1e-5))}\nv_fmac_f32 v15, {hx(f2u(1.0/384))}, v14\nv_rsq_f32 v14, v15\ns_nop 0\nv_mov_b32 v15, v14')
    for i in range(24):
        ln.append(f'v_pk_mul_f32 {vr(XU+2*i,2)}, {vr(XU+2*i,2)}, v[14:15]\nv_cvt_pk_bf16_f32 v{XR+i}, v{XU+2*i}, v{XU+1+2*i}')
        if i % 4 == 3: ln.append(f'ds_write_b128 v7, {vr(XR+i-3,4)} offset:{2048*(i//4)}')
    N0 = int(os.environ.get('N0', '3'))
    A('s_cmp_eq_u32 s3, 3\ns_cbranch_scc1 p1_ln3')
    for j in range(N0):
        for e in range(8): wld(j, e)
    A(f's_waitcnt vmcnt({8*N0})')
    stamp()
    rest = [(j, e) for j in range(N0, NS) for e in range(8)]
    step = max(1, len(ln) // (len(rest) + 1)) if rest else 0
    for i, t in enumerate(ln):
        A(t)
        if rest and i % step == step-1: wld(*rest.pop(0))
    assert not rest
    A('s_waitcnt lgkmcnt(0)\ns_barrier')
    stamp()
    def xrd(j):
        A('v_add_u32 v6, s34, v1\ns_add_u32 s34, s34, 1024\ns_cmp_eq_u32 s34, 12288\ns_cselect_b32 s34, 0, s34')
        for tb in range(2): A(f'ds_read_b128 {vr(XF+(j&1)*8+4*tb,4)}, v6 offset:{tb*12288}')
    def perm(j, c):
        for p in range(4):
            b = RG+(j%NS)*32
            A(f'v_perm_b32 v{PB+(j&1)*24+4*c+p}, v{b+4*(2*p+1)+c//2}, v{b+4*(2*p)+c//2}, s{60+(c&1)}')
    def main(swap):
        xrd(0)
        A(f's_waitcnt vmcnt({8*(NS-1)})')
        for c in range(6): perm(0, c)
        for j in range(12):
            if j < 11: xrd(j+1)
            if j+NS < 12:
                for e in range(8): wld(j+NS, e)
            if j < 11: A(f's_waitcnt vmcnt({8*(min(11, j+NS)-(j+1))}) lgkmcnt(2)')
            else: A('s_waitcnt lgkmcnt(0)')
            for c in range(6):
                for tb in range(2):
                    d = ar(ACC+(tb*6+c)*4); w = PB+(j&1)*24+4*c; x = XF+(j&1)*8+4*tb; cc = '0' if j == 0 else None
                    A(mfma32(d, x, w, cc) if swap else mfma32(d, w, x, cc))
                if j < 11: perm(j+1, c)
        A('s_nop 7')
        for i in range(48): A(f'v_accvgpr_read_b32 v{RG+i}, a{ACC+i}')
        for i in range(24): A(f'v_cvt_pk_bf16_f32 v{PB+i}, v{RG+2*i}, v{RG+2*i+1}')
    A('s_cmp_eq_u32 s3, 2\ns_cbranch_scc1 p1_v')
    main(False)
    A(f's_mul_i32 s42, s3, 6144\ns_add_u32 s42, s42, {QK}\nv_add_u32 v6, s42, v1')
    for i in range(6): A(f'ds_write_b128 v6, {vr(PB+4*i,4)} offset:{1024*i}')
    A('s_waitcnt lgkmcnt(0)\ns_barrier\ns_branch p1_spin')
    A.label('p1_v')
    main(True)
    stamp()
    A(f'v_bfe_u32 v12, v0, 2, 2\nv_cmp_eq_u32 vcc, v12, v2\ns_mov_b32 s49, {hx(f2u(SC))}')
    A('v_and_b32 v13, 3, v0\nv_mul_u32_u24 v13, 0x48000, v13\nv_lshl_add_u32 v13, v2, 8, v13\nv_lshl_add_u32 v13, v12, 4, v13')
    A(f's_lshr_b32 s50, s36, 4\ns_mul_i32 s50, s50, 12\ns_mul_i32 s51, s37, 3\ns_add_u32 s50, s50, s51\ns_lshl_b32 s50, s50, 10')
    A(f's_and_b32 s51, s36, 15\ns_lshl_b32 s51, s51, 4\ns_add_u32 s50, s50, s51\ns_add_u32 s50, s50, {OT}')
    A(f's_mul_i32 s51, s35, 43\ns_lshr_b32 s51, s51, 8\ns_mul_i32 s52, s51, 6\ns_sub_u32 s52, s35, s52\ns_lshl_b32 s52, s52, 2\ns_add_u32 s52, s52, s37\ns_lshl_b32 s52, s52, 2\ns_lshl_b32 s51, s51, 7\ns_add_u32 s51, s51, s52\ns_add_u32 s51, s51, {FL+4096}')
    A('s_barrier')
    F = 72; S = 120; O = 136
    for i in range(6):
        for m in range(2): A(f'ds_read_b128 {vr(F+(i*2+m)*4,4)}, v1 offset:{QK+m*6144+1024*i}')
    for tb in range(2):
        A(f's_waitcnt lgkmcnt({6*(1-tb)})')
        for j in range(3): A(mfma32(S+8*tb, F+((tb*3+j)*2+1)*4, F+((tb*3+j)*2)*4, '0' if j == 0 else None))
    A('s_nop 4')
    for tb in range(2):
        b = S+8*tb
        A(f'v_max3_f32 v{b+4}, v{b}, v{b+1}, v{b+2}\nv_max_f32 v{b+4}, v{b+4}, v{b+3}')
        for i in range(4): A(f'v_sub_f32 v{b+i}, v{b+i}, v{b+4}\nv_mul_f32 v{b+i}, s49, v{b+i}\nv_exp_f32 v{b+i}, v{b+i}')
        A(f's_nop 0\nv_add_f32 v{b+4}, v{b}, v{b+1}\nv_add_f32 v{b+5}, v{b+2}, v{b+3}\nv_add_f32 v{b+4}, v{b+4}, v{b+5}\nv_rcp_f32 v{b+4}, v{b+4}\ns_nop 0')
        A(f'v_cndmask_b32 v{b+4}, 0, v{b+4}, vcc')
        for i in range(4): A(f'v_mul_f32 v{b+i}, v{b+i}, v{b+4}')
        A(f'v_cvt_pk_bf16_f32 v{b+6}, v{b}, v{b+1}\nv_cvt_pk_bf16_f32 v{b+7}, v{b+2}, v{b+3}\ns_nop 1')
        for c in range(6): A(f'v_mfma_f32_16x16x16_bf16 {vr(O+(tb*6+c)*4,4)}, {vr(PB+tb*12+2*c,2)}, {vr(b+6,2)}, 0')
    A('s_nop 2')
    for tb in range(2):
        for j in range(3):
            for i in range(4): A(f'v_cvt_pk_bf16_f32 v{F+(tb*3+j)*4+i}, v{O+(tb*3+j)*8+2*i}, v{O+(tb*3+j)*8+2*i+1}')
            A(f'buffer_store_dwordx4 {vr(F+(tb*3+j)*4,4)}, v13, s[20:23], s50 offen offset:{64*tb+1024*j} sc1')
    A('v_mov_b32 v6, 1\nv_lshlrev_b32 v7, 10, v0\ns_waitcnt vmcnt(0)\ns_mov_b64 exec, 15\nbuffer_store_dword v6, v7, s[20:23], s51 offen sc1\ns_mov_b64 exec, -1')
    stamp()
    A.label('p1_spin')
    A('s_mov_b32 s43, 0x400000')
    A.label('p1_spl')
    A('ds_read_b32 v6, v18\ns_sub_u32 s43, s43, 1\ns_cbranch_scc1 p2_pre\ns_waitcnt lgkmcnt(0)\nv_cmp_ne_u32 vcc, 1, v6\ns_cbranch_vccz p2_pre\ns_sleep 1\ns_branch p1_spl')
    A.label('p1_ln3')
    A('s_waitcnt vmcnt(0)')
    for t in ln: A(t)
    A('s_waitcnt lgkmcnt(0)\ns_barrier')
    n0 = nst[0]
    wait('s_mov_b32 s42, s55', 1, 3, 8, SLP, False)
    A('s_barrier')
    A.label('p1_poll')
    wait(f's_lshl_b32 s42, s12, 8\ns_add_u32 s42, s42, {HL}', NH, 3, 20, 2, False)
    A('v_mov_b32 v6, 1\nds_write_b32 v18, v6\ns_branch p2_pre')
    A.label('p1_h3')
    wait('s_mov_b32 s42, s55', 1, 3, 8, 40, False)
    A(f's_waitcnt lgkmcnt(0)\ns_barrier\ns_cmp_ge_u32 s2, {192+NH}\ns_cbranch_scc1 p1_poll')
    A(f's_lshl_b32 s42, s36, 2\ns_add_u32 s42, s42, {HL}\nv_mov_b32 v6, 1\nv_lshlrev_b32 v7, 8, v0\ns_mov_b32 exec_hi, 0\nbuffer_store_dword v6, v7, s[20:23], s42 offen sc1\ns_mov_b64 exec, -1\ns_branch p1_poll')
    A.label('p1_helper')
    A('s_cmp_lg_u32 s2, 255\ns_cbranch_scc1 p1_nz\nv_mov_b32 v25, 0\nv_mov_b32 v26, 0\nv_mov_b32 v27, 0\ns_mul_i32 s47, s3, 9216')
    for q in range(9): A(f's_add_u32 s42, s47, {FL+q*1024}\nbuffer_store_dwordx4 v[24:27], v1, s[20:23], s42 offen sc1')
    A('s_waitcnt vmcnt(0)\ns_barrier\ns_cmp_lg_u32 s3, 2\ns_cbranch_scc1 p1_nz\nv_mov_b32 v6, 1\nv_lshlrev_b32 v7, 7, v0\ns_mov_b64 exec, 3\nbuffer_store_dword v6, v7, s[8:11], 0 offen sc1\ns_mov_b64 exec, -1')
    A.label('p1_nz')
    A(f's_cmp_eq_u32 s3, 3\ns_cbranch_scc1 p1_h3\ns_cmp_ge_u32 s2, {192+NH}\ns_cbranch_scc1 p1_hdone')
    A.label('p1_hw')
    A('v_bfe_u32 v10, v0, 2, 2\nv_and_b32 v11, 1, v2\nv_lshlrev_b32 v11, 1, v11\nv_and_b32 v8, 3, v0\nv_xor_b32 v11, v11, v8\nv_lshlrev_b32 v11, 4, v11')
    A('v_lshrrev_b32 v6, 2, v0\nv_lshlrev_b32 v6, 6, v6\nv_and_b32 v7, 1, v2\nv_lshl_add_u32 v6, v7, 5, v6\nv_lshl_add_u32 v6, v8, 3, v6\nv_xor_b32 v7, 32, v6')
    A('s_mul_i32 s36, s36, 3\ns_add_u32 s36, s36, s3')
    cases = [(0, 36, 90, 2304, 384, WF_QS, 12, CS_QS), (36, 84, 94, 3072, 384, WF_1, 12, CS_1), (84, 96, 88, 768, 384, WF_PT, 12, 0),
             (96, 108, 92, 768, 384, WF_PS, 12, 0)] + [(108+12*q, 120+12*q, 96, 768, 1536, WF_2 + q*12*KB, 48, 0) for q in range(4)]
    for ci, (lo, hi, p, ld, rows, dst, ks, cs) in enumerate(cases):
        if ci < len(cases)-1: A(f's_cmp_ge_u32 s36, {hi}\ns_cbranch_scc1 p1_c{ci+1}')
        A.srd(56, p, ld*rows)
        k0 = (ci-4)*384 if ci >= 4 else 0
        A(f's_mov_b32 s37, {ld}\ns_sub_u32 s47, s36, {lo}\ns_mov_b32 s48, {k0*ld}\ns_mov_b32 s49, {dst}\ns_mov_b32 s50, {ks*KB}\ns_mov_b32 s51, {cs}')
        if ci < len(cases)-1:
            A('s_branch p1_hgo'); A.label(f'p1_c{ci+1}')
    A.label('p1_hgo')
    A('v_lshrrev_b32 v12, 2, v0\nv_mul_lo_u32 v12, v12, s37\nv_lshl_add_u32 v13, v2, 3, v10\nv_mul_lo_u32 v13, v13, s37')
    A('s_lshl_b32 s43, s47, 6\ns_add_u32 s48, s48, s43\ns_lshl_b32 s32, s37, 4\ns_lshl_b32 s33, s37, 2\ns_lshl_b32 s34, s37, 5\ns_mov_b32 s35, s34\ns_mul_i32 s52, s3, 24576\ns_mov_b32 m0, s52')
    A(f's_cmp_lg_u32 s49, {WF_PT}\ns_cbranch_scc1 p1_hnat\nv_mul_u32_u24 v12, 6, v12\nv_mov_b32 v13, v12\ns_mov_b32 s32, 768\ns_mov_b32 s33, 768\ns_mov_b32 s34, 1536\ns_mov_b32 s35, {92*768}')
    A.label('p1_hnat')
    A('v_add_u32 v12, v12, v11\nv_add_u32 v13, v13, v11')
    for j in range(12):
        v = 13 if j % 3 == 1 else 12
        A(f's_add_u32 s43, s48, s{33 if j % 3 == 1 else 32}\nbuffer_load_dwordx4 v{v}, s[56:59], s48 offen lds\ns_add_u32 m0, m0, 1024\ns_add_u32 s48, s48, s{35 if j % 3 == 2 else 34}')
        A(f'buffer_load_dwordx4 v{v}, s[56:59], s43 offen lds\ns_add_u32 m0, m0, 1024')
    A('v_add_u32 v6, s52, v6\nv_add_u32 v7, s52, v7')
    A('s_lshl_b32 s53, s47, 1\ns_mul_i32 s53, s53, s50\ns_add_u32 s53, s53, s49\ns_add_u32 s54, s53, s50')
    for i in range(4): A(f'v_mov_b32 v{128+i}, 0x3f803f80')
    nst[0] = 1; stamp()
    for q in range(4):
        A(f's_waitcnt vmcnt({6*(3-q)+6*q})')
        for j in range(3*q, 3*q+3):
            for c in range(2):
                for hh in range(2): A(f'ds_read_b64_tr_b16 {vr(24+(j*2+c)*4+hh*2,2)}, v{6+c} offset:{j*2048+hh*1024}')
        A('s_waitcnt lgkmcnt(0)')
        for j in range(3*q, 3*q+3):
            for c in range(2):
                A(f'buffer_store_dwordx4 {vr(24+(j*2+c)*4,4)}, v1, s[20:23], s{53+c} offen offset:{(j%4)*1024} sc1')
                A(mfma32(120+4*c, 24+(j*2+c)*4, 128, '0' if j == 0 else None))
            if j % 4 == 3: A('s_add_u32 s53, s53, 4096\ns_add_u32 s54, s54, 4096')
    stamp()
    A('s_cmp_eq_u32 s51, 0\ns_cbranch_scc1 p1_hdone')
    A('s_lshl_b32 s43, s47, 7\ns_add_u32 s51, s51, s43\nv_lshlrev_b32 v10, 4, v2\nv_cmp_eq_u32 vcc, 0, v3\ns_nop 7\ns_mov_b64 exec, vcc')
    for c in range(2): A(f'buffer_store_dwordx4 {vr(120+4*c,4)}, v10, s[20:23], s51 offen offset:{64*c} sc1')
    A('s_mov_b64 exec, -1')
    A.label('p1_hdone')
    A('s_waitcnt vmcnt(0) lgkmcnt(0)\ns_barrier')
    stamp()
    A('s_branch p1_spin')
    nst[0] = n0
```

```python
import sys
from common import *
from k1 import gen_k1
from g48 import gen_g48
from g96 import gen_g96
from k4 import gen_k4
ks = [("k1", gen_k1())]
from kb import gen_kb
if os.environ.get('MEGA', '2') == '1': ks = [ks[0], ('kb', gen_kb())]
if os.environ.get('MEGA', '2') == '2':
    from km import gen_km
    ks = [('km', gen_km())]
nempty = int(sys.argv[2]) if len(sys.argv) > 2 else 0
for i in range(nempty): ks.append((f'e{i}', ('    s_endpgm\n', 32, 0, 256, 256)))
hdr = []
for l in open('standalone__video_videomae__vision.s.ref').read().split('\n'):
    if l.startswith('; @launch'): break
    hdr.append(l)
out = '\n'.join(hdr) + '\n'
for n, (t, vg, lds, g, b) in ks: out += f'; @launch kernel={n}_kernel grid=({g},1,1) block=({b},1,1) lds={lds}\n'
out += '.amdgcn_target "amdgcn-amd-amdhsa--gfx950"\n.text\n'
for n, (t, vg, lds, g, b) in ks: out += f'.globl {n}_kernel\n.p2align 8\n.type {n}_kernel,@function\n{n}_kernel:\n' + t
out += '.section .rodata,"a"\n'
for n, (t, vg, lds, g, b) in ks: out += kdesc(n + '_kernel', vg, 102, acc=(256 if vg > 256 else None))
open(sys.argv[1], 'w').write(out)
```

```python
from common import *
from p1 import SC, phase1, NH
RES, ACC, WK, W25 = 16, 24, 60, 188
RED = 36864; TAB3 = 73728; TAB6 = TAB3 + 2048; LW = TAB6 + 2048; LDSB = LW + 64
EARLY = int(os.environ.get('EARLY', '1'))
QP = int(os.environ.get('QP', '1'))
SW = int(os.environ.get('SW', '2'))
def w37(i): return ar(4*i)
def w6(i): return ar(144+4*i) if i < 28 else vr(224+4*(i-28), 4)
def gen_km():
    A = Asm(); nst = [0]
    def stamp():
        if STAMPS:
            i = nst[0]; nst[0] += 1
            A(f's_memrealtime s[100:101]\ns_waitcnt lgkmcnt(0)\nv_writelane_b32 v22, s100, {i}')
    A('s_cmp_ge_u32 s2, 256\ns_cbranch_scc1 kb_end')
    stamp()
    A('s_load_dwordx16 s[84:99], s[0:1], 0\ns_load_dwordx4 s[4:7], s[0:1], 64')
    A('v_mov_b32 v9, v0\nv_lshrrev_b32 v1, 6, v0\nv_and_b32 v0, 63, v0\ns_and_b32 s10, s2, 7\nv_readfirstlane_b32 s3, v1')
    A('s_lshr_b32 s11, s2, 3\ns_lshl_b32 s12, s10, 2\ns_and_b32 s13, s11, 3\ns_add_u32 s12, s12, s13\ns_lshr_b32 s13, s11, 2')
    A('v_lshlrev_b32 v1, 4, v0\nv_lshrrev_b32 v2, 4, v0\nv_and_b32 v3, 15, v0\nv_lshlrev_b32 v5, 2, v0')
    A('s_mul_i32 s14, s12, 3\ns_mul_i32 s15, s13, 3\ns_add_u32 s19, s14, s3')
    A('s_and_b32 s68, s13, 1\ns_and_b32 s69, s3, 1')
    for p, o in ((68, 62), (69, 65)):
        A(f's_mov_b32 s{o}, s{p}\ns_add_u32 s{o+1}, s{p}, 1\ns_cmp_eq_u32 s{p}, 1\ns_cselect_b32 s{o+2}, 0, 2')
    A('s_lshr_b32 s42, s13, 1\ns_mul_i32 s42, s42, 3\ns_mul_i32 s38, s19, 12\ns_add_u32 s38, s38, s42\ns_lshl_b32 s38, s38, 10\ns_lshl_b32 s42, s68, 9\ns_add_u32 s39, s38, s42\ns_add_u32 s39, s39, 1024\ns_lshl_b32 s42, s68, 11\ns_add_u32 s38, s38, s42')
    A('s_lshl_b32 s70, s69, 11\ns_lshl_b32 s71, s69, 9\ns_add_u32 s71, s71, 1024\ns_mov_b32 s72, 0xffff\ns_mov_b32 s73, 0xffff')
    A('v_lshrrev_b32 v23, 1, v2\nv_lshl_add_u32 v23, v23, 4, v3\nv_lshlrev_b32 v23, 4, v23')
    A('v_mul_u32_u24 v4, 768, v3\nv_lshl_add_u32 v4, v2, 3, v4\ns_mul_i32 s41, s19, 12288\ns_lshl_b32 s42, s15, 5\ns_add_u32 s41, s41, s42')
    for b in range(3): A(f's_lshl_b32 s42, s{62+b}, 5\ns_add_u32 s{74+b}, s41, s42')
    A('s_mul_i32 s16, s14, 12288\ns_mul_i32 s17, s3, 3072\ns_add_u32 s16, s16, s17')
    A('s_mul_i32 s18, s15, 12288\ns_add_u32 s18, s18, s17')
    A('s_lshl_b32 s44, s13, 2\ns_add_u32 s44, s44, s3\ns_mul_i32 s44, s44, 36864')
    for b in range(3): A(f's_mul_i32 s42, s{62+b}, 12288\ns_add_u32 s{77+b}, s18, s42\ns_mul_i32 s42, s{65+b}, 12288\ns_add_u32 s{80+b}, s44, s42')
    A(f's_lshl_b32 s45, s12, 7\ns_add_u32 s45, s45, {FL}\ns_mov_b32 s46, s13\n{wmap(46, 42)}\ns_add_u32 s46, s46, s45')
    A('s_mov_b32 s40, 0x4000\ns_waitcnt lgkmcnt(0)')
    A.srd(20, 6, WS_USED); A.srd(24, 84, 1536*768); A.srd(28, 98, 1536*768); A.srd(8, 4, 256)
    def ldrun(dst, n, base, const, sc=''):
        for i in range(n):
            if i % 4 == 0: A(f's_add_u32 s42, s{base}, {const + i*1024}')
            A(f'buffer_load_dwordx4 {dst(i)}, v1, s[20:23], s42 offen offset:{(i%4)*1024}{sc}')
    def ld1(dst, base, const, i, sc=''):
        A(f's_add_u32 s42, s{base}, {const + i*1024}\nbuffer_load_dwordx4 {dst}, v1, s[20:23], s42 offen{sc}')
    def half1(d, soff):
        A(f'v_mov_b32 v{d+2}, v{d}\nv_mov_b32 v{d+3}, v{d+1}\ns_nop 1\nv_permlane16_swap_b32 v{d}, v{d+2}\nv_permlane16_swap_b32 v{d+1}, v{d+3}')
        A(f's_mov_b64 exec, s[72:73]\nbuffer_store_dwordx4 {vr(d,4)}, v23, s[20:23], {soff} offen sc1\ns_mov_b64 exec, -1')
    def half2(d, va, soff):
        A(f's_nop 1\nv_permlane16_swap_b32 v{d}, v{d+2}\nv_permlane16_swap_b32 v{d+1}, v{d+3}\nbuffer_store_dwordx4 {vr(d,4)}, v{va}, s[20:23], {soff} offen sc1')
    def signal(soff_expr, n=0, rep=1, sh=8, EARLY=EARLY):
        A('s_barrier' if EARLY else f's_waitcnt vmcnt({n})\ns_barrier')
        stamp()
        l = f'kb_s{nst[0]}_{len(A.l)}'
        A(f's_cmp_lg_u32 s3, 0\ns_cbranch_scc1 {l}\n{soff_expr}\ns_mov_b64 exec, {(1<<rep)-1}\nv_mov_b32 v6, 1\nv_lshlrev_b32 v7, {sh}, v0\nbuffer_store_dword v6, v7, s[20:23], s42 offen sc1\ns_mov_b64 exec, -1')
        A.label(l)
    def wait(soff_expr, n, wv=0, srd=20, slp=0, bar=True, val='1'):
        l = f'kb_w{len(A.l)}'
        A(f's_cmp_lg_u32 s3, {wv}\ns_cbranch_scc1 {l}_d\n{soff_expr}\nv_lshrrev_b32 v7, 3, v0\nv_lshlrev_b32 v7, 7, v7\nv_and_b32 v6, 7, v0\nv_lshl_add_u32 v7, v6, 2, v7\ns_mov_b32 s43, 0x40000\ns_mov_b32 exec_lo, {hx((1<<n)-1)}\ns_mov_b32 exec_hi, {hx(((1<<n)-1)>>32)}')
        A.label(l)
        A(f'buffer_load_dword v6, v{7 if n == 24 else 5}, s[{srd}:{srd+3}], s42 offen sc1\ns_sub_u32 s43, s43, 1\ns_cbranch_scc1 {l}_x\ns_waitcnt vmcnt(0)\nv_cmp_ne_u32 vcc, {val}, v6\n' + (f's_cbranch_vccz {l}_x\ns_sleep {slp}\ns_branch {l}' if slp else f's_cbranch_vccnz {l}'))
        A.label(l + '_x'); A('s_mov_b64 exec, -1')
        A.label(l + '_d')
        if bar: A('s_barrier'); stamp()
    def chain(t, regs, first):
        regs = list(regs)
        if first: A(f'v_max_u32 v{t}, v{regs[0]}, v{regs[1]}'); regs = regs[2:]
        while len(regs) > 1: A(f'v_max3_u32 v{t}, v{t}, v{regs[0]}, v{regs[1]}'); regs = regs[2:]
        if regs: A(f'v_max_u32 v{t}, v{t}, v{regs[0]}')
    def check(t, lbl):
        A(f'v_cmp_eq_u32 vcc, -1, v{t}\ns_cbranch_vccz {lbl}_ok\ns_sub_u32 s40, s40, 1\ns_cbranch_scc0 {lbl}\ns_mov_b32 s40, 0')
        A.label(lbl + '_ok')
    def st16(d, va, soff, half=False):
        if half: A('s_mov_b64 exec, s[72:73]')
        A(f'buffer_store_dwordx4 {vr(d,4)}, v{va}, s[20:23], {soff} offen sc1')
        if half: A('s_mov_b64 exec, -1')
    def stat_store(T, st):
        A(f'v_lshlrev_b32 v6, 6, v0\ns_lshl_b32 s42, s19, 10\ns_lshl_b32 s43, s13, 3\ns_add_u32 s42, s42, s43\ns_add_u32 s42, s42, {st}')
        A(f's_mov_b64 exec, 0xffff\nbuffer_store_dwordx2 {vr(T,2)}, v6, s[20:23], s42 offen sc1\ns_mov_b64 exec, -1')
    def a3():
        A('s_lshr_b32 s47, s12, 3\ns_lshl_b32 s47, s47, 2\ns_and_b32 s48, s13, 1\ns_lshl_b32 s48, s48, 1\ns_add_u32 s47, s47, s48\ns_lshr_b32 s48, s3, 1\ns_add_u32 s47, s47, s48\ns_mul_i32 s47, s47, 73728')
        A(f's_lshr_b32 s48, s13, 1\ns_mul_i32 s48, s48, {KF-QF}\ns_add_u32 s47, s47, s48\ns_add_u32 s47, s47, {QF}\ns_and_b32 s48, s12, 7\ns_and_b32 s49, s3, 1')
    def a3qk(): A('s_mul_i32 s48, s48, 9216\ns_add_u32 s47, s47, s48\ns_add_u32 s50, s47, s70\ns_add_u32 s51, s47, s71\ns_add_u32 s52, s51, 6144\nv_and_b32 v6, 1, v2\nv_mul_u32_u24 v6, 3072, v6\nv_add_u32 v6, v6, v23')
    def a3v():
        A('s_and_b32 s83, s12, 1\ns_lshr_b32 s48, s48, 1\ns_mul_i32 s48, s48, 18432\ns_add_u32 s47, s47, s48\ns_mul_i32 s49, s49, 3072\ns_add_u32 s47, s47, s49\ns_mul_i32 s42, s83, 12288\ns_add_u32 s48, s47, s42\ns_lshl_b32 s42, s83, 9\ns_add_u32 s49, s47, s42\ns_add_u32 s49, s49, 6144')
        for b in range(3): A(f's_lshl_b32 s42, s{65+b}, 10\ns_add_u32 s{50+b}, s48, s42\ns_add_u32 s{53+b}, s49, s42')
        A('v_and_b32 v6, 1, v2\nv_lshl_add_u32 v6, v6, 10, v23')
    def a4():
        A(f's_add_u32 s55, s14, s51\ns_add_u32 s55, s55, s54\ns_mul_i32 s55, s55, 12\ns_mul_i32 s42, s48, 3\ns_add_u32 s55, s55, s42\ns_lshl_b32 s55, s55, 10\ns_add_u32 s55, s55, {OS}')
        A('s_add_u32 s56, s55, s70\ns_add_u32 s57, s55, s71')
    def a6():
        A(f's_mul_i32 s47, s14, 49152\ns_mul_i32 s48, s13, 6144\ns_add_u32 s47, s47, s48\ns_lshr_b32 s48, s3, 1\ns_mul_i32 s48, s48, 3072\ns_add_u32 s47, s47, s48\ns_add_u32 s47, s47, {HID}')
        A('s_add_u32 s50, s47, s70\ns_add_u32 s51, s47, s71\ns_add_u32 s52, s51, 98304\nv_and_b32 v6, 1, v2\nv_mul_u32_u24 v6, 49152, v6\nv_add_u32 v6, v6, v23')
    def poison(u, P=88):
        def run(base, const, n, va=1, step=1024):
            for i in range(n):
                if (i*step) % 4096 == 0: A(f's_add_u32 s42, s{base}, {const + i*step}')
                A(f'buffer_store_dwordx4 {vr(P,4)}, v{va}, s[20:23], s42 offen offset:{(i*step) % 4096} sc1')
        for i in range(4): A(f'v_mov_b32 v{P+i}, -1')
        if u[0] in 'xy':
            XX, SS = ((X1,), (ST1,)) if u[0] == 'x' else ((X2,), (ST2,))
            A('s_mul_i32 s32, s3, 12288\ns_sub_u32 s33, s38, s32\ns_sub_u32 s34, s39, s32\ns_lshl_b32 s35, s14, 10\ns_lshl_b32 s36, s13, 3\ns_add_u32 s35, s35, s36\nv_lshlrev_b32 v6, 6, v0')
            for dst in XX: run(33, dst, 3, 1, 12288)
            A('s_mov_b32 exec_hi, 0xffff')
            for st in SS: A(f's_add_u32 s42, s35, {st}\nbuffer_store_dwordx2 {vr(P,2)}, v6, s[20:23], s42 offen sc1')
            A('s_mov_b32 exec_hi, 0')
            for dst in XX: run(34, dst, 3, 1, 12288)
            A('s_mov_b64 exec, -1')
        if u[0] == 'x':
            A('s_lshl_b32 s32, s68, 1\ns_add_u32 s32, s32, s14\ns_lshl_b32 s32, s32, 2\ns_lshr_b32 s33, s13, 1\ns_add_u32 s32, s32, s33\ns_mul_i32 s32, s32, 3072')
            run(32, OS, 3)
            A(f's_cmp_eq_u32 s68, 1\ns_cbranch_scc1 po_4{u}'); run(32, OS+12288, 3)
            A.label(f'po_4{u}')
        if u[0] == 'q':
            A(f's_mov_b64 exec, -1\ns_cmp_ge_u32 s13, 6\ns_cbranch_scc1 po_3{u}')
            A(f's_lshr_b32 s32, s12, 3\ns_lshl_b32 s32, s32, 1\ns_add_u32 s32, s32, s68\ns_mul_i32 s32, s32, 147456\ns_lshr_b32 s33, s13, 1\ns_mul_i32 s33, s33, {KF-QF}\ns_add_u32 s32, s32, s33\ns_and_b32 s33, s12, 7')
            A(f's_cmp_ge_u32 s13, 4\ns_cbranch_scc1 po_2{u}\ns_mul_i32 s33, s33, 9216\ns_add_u32 s32, s32, s33')
            for hh in range(2): run(32, QF+hh*73728, 9)
            A(f's_branch po_3{u}')
            A.label(f'po_2{u}')
            A('s_lshr_b32 s34, s33, 1\ns_mul_i32 s34, s34, 18432\ns_add_u32 s32, s32, s34\ns_and_b32 s33, s33, 1\ns_lshl_b32 s34, s33, 9\ns_add_u32 s34, s34, s32\ns_mul_i32 s33, s33, 12288\ns_add_u32 s33, s33, s32')
            A('v_lshrrev_b32 v6, 5, v0\nv_lshl_add_u32 v6, v6, 9, v1')
            for hh in range(2): run(33, QF+hh*73728, 6); run(34, QF+hh*73728+6144, 3, 6, 2048)
            A.label(f'po_3{u}')
        if u[0] == 'h':
            A('s_mul_i32 s32, s14, 49152\ns_mul_i32 s33, s13, 6144\ns_add_u32 s32, s32, s33')
            A('s_max_u32 s33, s3, 1\ns_sub_u32 s33, s33, 1\ns_mul_i32 s33, s33, 49152\ns_add_u32 s32, s32, s33'); run(32, HID, 6)
    def only(w, fn, neg=False):
        l = f'on{len(A.l)}'
        A(f's_cmp_{"eq" if neg else "lg"}_u32 s3, {w}\ns_cbranch_scc1 {l}'); fn(); A.label(l)
    def g48(name, KW, a_frag, wf, nafter, dst, st, mid=None, w3=None):
        for j in range(KW):
            A(f's_waitcnt vmcnt({min(63, nafter + 3*(KW-1-j))})')
            for a in range(3):
                for b in range(3): A(mfma32(ACC+(a*3+b)*4, wf(b*KW+j), a_frag(j*3+a), '0' if j == 0 else None))
            if name != 'p2': chain(8, [a_frag(j*3+a) for a in range(3)], j == 0)
        if name != 'p2': check(8, name + '_re')
        stamp()
        if mid: mid()
        A(f's_mul_i32 s42, s3, 9216\ns_add_u32 s42, s42, {RED}\nv_add_u32 v6, s42, v1\ns_mul_i32 s42, s3, 3072\ns_add_u32 s42, s42, {RED}\nv_add_u32 v7, s42, v1\ns_nop 2')
        for i in range(9): A(f'ds_write_b128 v6, {vr(ACC+4*i,4)} offset:{1024*i}')
        A(f's_waitcnt lgkmcnt(0)\ns_barrier\ns_cmp_eq_u32 s3, 3\ns_cbranch_scc1 {name}_fin')
        for w in range(4):
            for b in range(3): A(f'ds_read_b128 {vr(WK+(w*3+b)*4,4)}, v7 offset:{w*9216+b*1024}')
        for i in range(6): A(f'v_lshlrev_b32 v{ACC+2*i}, 16, v{RES+i}\nv_and_b32 v{ACC+2*i+1}, 0xffff0000, v{RES+i}')
        for w in range(4):
            A(f's_waitcnt lgkmcnt({3*(3-w)})')
            for i in range(6): A(f'v_pk_add_f32 {vr(ACC+2*i,2)}, {vr(ACC+2*i,2)}, {vr(WK+w*12+2*i,2)}')
        for i in range(6): A(f'v_cvt_pk_bf16_f32 v{RES+i}, v{ACC+2*i}, v{ACC+2*i+1}')
        if dst == 'out':
            for b in range(3): A(f'buffer_store_dwordx2 {vr(RES+2*b,2)}, v4, s[28:31], s{74+b} offen')
        else:
            A(f's_add_u32 s42, s38, {dst}\nbuffer_store_dwordx4 {vr(RES,4)}, v1, s[20:23], s42 offen sc1\nv_mov_b32 v12, v{RES+4}\nv_mov_b32 v13, v{RES+5}\ns_add_u32 s42, s39, {dst}')
            half1(12, 's42')
        if st is not None:
            T = WK
            for i in range(6): A(f'v_lshlrev_b32 v{ACC+2*i}, 16, v{RES+i}\nv_and_b32 v{ACC+2*i+1}, 0xffff0000, v{RES+i}')
            A(f'v_pk_add_f32 {vr(T,2)}, {vr(ACC,2)}, {vr(ACC+2,2)}\nv_pk_mul_f32 {vr(T+2,2)}, {vr(ACC,2)}, {vr(ACC,2)}')
            for i in range(2, 6): A(f'v_pk_add_f32 {vr(T,2)}, {vr(T,2)}, {vr(ACC+2*i,2)}')
            for i in range(1, 6): A(f'v_pk_fma_f32 {vr(T+2,2)}, {vr(ACC+2*i,2)}, {vr(ACC+2*i,2)}, {vr(T+2,2)}')
            A(f'v_add_f32 v{T}, v{T}, v{T+1}\nv_add_f32 v{T+1}, v{T+2}, v{T+3}')
            red_g(A, T, T+4, 'v_add_f32'); red_g(A, T+1, T+4, 'v_add_f32')
            stat_store(T, st)
        A.label(f'{name}_fin')
        if w3: only(3, w3)
    def a48(off, sc):
        for a in range(3): A(f's_add_u32 s{32+a}, s16, {off + a*12288}')
        for j in range(3):
            for a in range(3): A(f'buffer_load_dwordx4 {vr(WK+(j*3+a)*4,4)}, v1, s[20:23], s{32+a} offen offset:{j*1024}{sc}')
    def w48(off):
        for b in range(3): ldrun(lambda i: vr(W25+(b*3+i)*4, 4), 3, 77+b, off)
    def g192(name, Xoff, ST, TAB, wf, prefetch, epi):
        A.label(name + '_re')
        A(f's_min_u32 s43, s3, 2\ns_add_u32 s42, s14, s43\ns_lshl_b32 s42, s42, 10\ns_add_u32 s42, s42, {ST}\nv_lshlrev_b32 v6, 6, v3\nv_lshl_add_u32 v6, v2, 4, v6')
        A('buffer_load_dwordx4 v[12:15], v6, s[20:23], s42 offen sc1')
        a48(Xoff, ' sc1')
        npf = 0
        A(f's_mul_i32 s42, s3, 9216\nv_add_u32 v6, s42, v1\ns_lshl_b32 s43, s43, 7\ns_add_u32 s43, s43, {TAB}\nv_lshl_add_u32 v7, v3, 3, s43')
        A(f's_waitcnt vmcnt({npf+9})\nv_max_u32 v8, v12, v14\nv_pk_add_f32 v[12:13], v[12:13], v[14:15]')
        red_g(A, 12, 14, 'v_add_f32'); red_g(A, 13, 14, 'v_add_f32')
        A(f'v_mul_f32 v12, {hx(f2u(1/384))}, v12\nv_mul_f32 v13, {hx(f2u(1/384))}, v13\nv_fma_f32 v13, -v12, v12, v13\nv_max_f32 v13, 0, v13\nv_add_f32 v13, {hx(f2u(1e-5))}, v13\nv_rsq_f32 v13, v13\ns_nop 0\nds_write_b64 v7, v[12:13]')
        for i in range(9): A(f's_waitcnt vmcnt({npf+8-i})\nds_write_b128 v6, {vr(WK+4*i,4)} offset:{1024*i}\nv_max_u32 v8, v8, v{WK+4*i}')
        A('s_waitcnt lgkmcnt(0)'); check(8, name + '_re'); A('s_barrier')
        stamp()
        epi(lambda swap: main192(wf, swap, prefetch))
    def main192(wf, swap, prefetch):
        FB = WK
        def rd(j):
            for a in range(3): A(f'ds_read_b128 {vr(FB+(j%3)*12+4*a,4)}, v{(13+a) if swap else 1} offset:{(j*3+(0 if swap else a))*1024}')
        rd(0); rd(1)
        for j in range(12):
            if j+2 < 12: rd(j+2)
            A(f's_waitcnt lgkmcnt({3*min(2, 11-j)})')
            for a in range(3):
                for b in range(3):
                    x = FB+(j%3)*12+4*a; w = wf(b*12+j); c = '0' if j == 0 else None
                    A(mfma32(ACC+(a*3+b)*4, x, w, c) if swap else mfma32(ACC+(a*3+b)*4, w, x, c))
                prefetch(a, j)
    def lnT(TAB):
        A(f's_mul_i32 s43, s3, 384\ns_add_u32 s43, s43, {TAB+384}\nv_lshlrev_b32 v7, 3, v3\nv_add_u32 v7, {TAB}, v7')
        for b in range(3): A(f's_lshl_b32 s42, s{65+b}, 7\ns_add_u32 s42, s42, s43\nv_lshl_add_u32 v6, v2, 5, s42\nds_read_b128 {vr(100+8*b,4)}, v6\nds_read_b128 {vr(104+8*b,4)}, v6 offset:16\nds_read_b64 {vr(124+2*b,2)}, v7 offset:{128*b}')
    def lnT_apply(a, b):
        for i in range(4):
            r = ACC+(a*3+b)*4+i
            A(f'v_fma_f32 v{r}, -v{100+8*b+2*i}, v{124+2*a}, v{r}\nv_mul_f32 v{r}, v{r}, v{125+2*a}')
    def storesT(act, stride):
        for a in range(3):
            for b in range(3): lnT_apply(a, b)
            act(a)
            r = ACC+a*12
            for i in range(4): A(f'v_cvt_pk_bf16_f32 v{WK+4*a+i}, v{r+2*i}, v{r+2*i+1}')
            A(f'buffer_store_dwordx4 {vr(WK+4*a,4)}, v1, s[20:23], s50 offen sc1')
            if a < 2: A(f's_add_u32 s50, s50, {stride}')
            for i in range(2): A(f'v_cvt_pk_bf16_f32 v{WK+12+2*a+i}, v{r+8+2*i}, v{r+9+2*i}')
            if a == 1: half2(WK+12, 6, 's51')
            if a == 2: half1(WK+16, 's52')
    phase1(A, stamp, wait, nst, LW, poison, EARLY, only)
    A.label('p2_pre')
    for b in range(3): A(f'buffer_load_dwordx2 {vr(RES+2*b,2)}, v4, s[24:27], s{74+b} offen')
    w48(WF_PT)
    A(f's_cmp_lg_u32 s3, 3\ns_cbranch_scc1 w2_d\ns_lshl_b32 s42, s12, 9\ns_add_u32 s42, s42, {FO}\ns_lshl_b32 s47, s12, 8\ns_add_u32 s47, s47, {HL}\ns_mov_b32 s43, 0x40000')
    A('v_lshrrev_b32 v7, 3, v0\nv_lshlrev_b32 v7, 7, v7\nv_and_b32 v6, 7, v0\nv_lshl_add_u32 v7, v6, 2, v7\nv_mov_b32 v6, 1')
    A.label('w2_l')
    A(f's_mov_b64 exec, 0xffffff\nbuffer_load_dword v6, v7, s[20:23], s42 offen sc1\ns_mov_b32 exec_lo, -1\ns_mov_b32 exec_hi, {hx((1<<(NH-32))-1)}\nbuffer_load_dword v8, v5, s[20:23], s47 offen sc1')
    A('s_sub_u32 s43, s43, 1\ns_cbranch_scc1 w2_x\ns_waitcnt vmcnt(0)\nv_and_b32 v8, v8, v6\nv_cmp_ne_u32 vcc, 1, v8\ns_cbranch_vccnz w2_l')
    A.label('w2_x'); A('s_mov_b64 exec, -1')
    A.label('w2_d'); A('s_barrier'); stamp()
    def p2mid():
        only(3, lambda: A('s_waitcnt vmcnt(12)\nds_write_b64 v8, v[10:11]\nds_write_b64 v8, v[14:15] offset:2048'), True)
        if QP: only(3, lambda: poison('q', 112))
        ldrun(lambda i: w37(12+i), 12, 81, WF_QS)
    def w3c(): ldrun(lambda i: w37(24+i), 12, 82, WF_QS)
    a48(OT, ' sc1')
    A(f'v_lshlrev_b32 v8, 2, v9\ns_mul_i32 s43, s13, 768\ns_add_u32 s42, s43, {CS_QS}\nbuffer_load_dword v10, v8, s[20:23], s42 offen\ns_add_u32 s42, s43, {CS_1}\nbuffer_load_dword v14, v8, s[20:23], s42 offen')
    ldrun(w37, 12, 80, WF_QS)
    A(f'v_mov_b32 v11, 1.0\nv_mov_b32 v15, 1.0\nv_lshlrev_b32 v8, 3, v9\nv_add_u32 v8, {TAB3+384}, v8')
    g48('p2', 3, lambda i: WK+4*i, lambda i: W25+4*i, 14, X1, ST1, p2mid, w3c)
    signal('s_mov_b32 s42, s46', 0)
    only(3, w3c, True)
    def pf6(b, j):
        if b < 2: ld1(w6(b*12+j), 80+b, WF_1, j)
    A('s_cmp_lt_u32 s13, 6\ns_cbranch_scc1 p3_go')
    for b in range(2): ldrun(lambda i: w6(b*12+i), 12, 80+b, WF_1)
    if STAMPS: nst[0] += 0
    A('s_branch p4_start')
    A.label('p3_go')
    wait('s_mov_b32 s42, s45', 8, 3)
    def epi3(main):
        a3()
        A('s_cmp_ge_u32 s13, 4\ns_cbranch_scc1 p3_v')
        lnT(TAB3); main(False); stamp()
        a3qk()
        storesT(lambda a: None, 3072)
        A('s_branch p3_done')
        A.label('p3_v')
        A('s_and_b32 s42, s12, 1\ns_mov_b32 s83, s42\ns_add_u32 s84, s42, 1\ns_cmp_eq_u32 s42, 1\ns_cselect_b32 s85, 0, 2')
        A(f's_mul_i32 s43, s3, 384\ns_add_u32 s43, s43, {TAB3+384}')
        for b in range(3):
            A(f's_lshl_b32 s42, s{83+b}, 10\nv_add_u32 v{13+b}, s42, v1\ns_lshl_b32 s42, s{83+b}, 7\ns_add_u32 s42, s42, {TAB3}\nv_lshl_add_u32 v6, v2, 5, s42\ns_lshl_b32 s42, s{65+b}, 7\ns_add_u32 s42, s42, s43\nv_lshl_add_u32 v7, v3, 3, s42')
            A(f'ds_read_b128 {vr(100+8*b,4)}, v6\nds_read_b128 {vr(104+8*b,4)}, v6 offset:16\nds_read_b64 {vr(124+2*b,2)}, v7')
        main(True)
        if STAMPS: nst[0] -= 1
        stamp()
        a3v()
        for b in range(3):
            for a in range(3):
                r = ACC+(a*3+b)*4; o = WK+4*b+2*a if a < 2 else WK+12+2*b
                for i in range(4): A(f'v_fma_f32 v{r+i}, -v{100+8*a+2*i}, v{124+2*b}, v{r+i}\nv_mul_f32 v{r+i}, v{r+i}, v{101+8*a+2*i}')
                A(f'v_cvt_pk_bf16_f32 v{o}, v{r}, v{r+1}\nv_cvt_pk_bf16_f32 v{o+1}, v{r+2}, v{r+3}')
            A(f'buffer_store_dwordx4 {vr(WK+4*b,4)}, v1, s[20:23], s{50+b} offen sc1')
            if b == 1: half2(WK+12, 6, 's53')
            if b == 2: half1(WK+16, 's55')
        A.label('p3_done')
    g192('p3', X1, ST1, TAB3, w37, pf6, epi3)
    signal(f's_and_b32 s42, s12, 7\ns_mul_i32 s42, s42, 3\ns_lshr_b32 s43, s13, 1\ns_add_u32 s42, s42, s43\n{wmap(42, 43)}\ns_lshr_b32 s43, s12, 3\ns_lshl_b32 s43, s43, 4\ns_add_u32 s43, s43, s68\ns_lshl_b32 s43, s43, 9\ns_add_u32 s42, s42, s43\ns_add_u32 s42, s42, {F3}', 0, 8, 10, QP)
    A.label('p4_start')
    A(f's_lshr_b32 s47, s12, 3\ns_lshl_b32 s47, s47, 2\ns_lshr_b32 s48, s13, 1\ns_add_u32 s47, s47, s48\ns_mul_i32 s49, s47, 73728')
    A(f's_and_b32 s50, s12, 7\ns_mul_i32 s50, s50, 3\ns_and_b32 s51, s13, 1\ns_add_u32 s50, s50, s51\ns_mul_i32 s50, s50, 3072\ns_add_u32 s50, s50, s49')
    A(f's_mul_i32 s52, s3, 18432\ns_add_u32 s52, s52, s49')
    A('v_lshrrev_b32 v9, 3, v3\nv_mul_u32_u24 v9, 3072, v9\nv_lshl_add_u32 v9, v2, 8, v9\nv_bfe_u32 v6, v3, 2, 1\nv_lshl_add_u32 v9, v6, 7, v9\nv_and_b32 v6, 3, v3\nv_lshl_add_u32 v9, v6, 4, v9')
    wait(f's_lshl_b32 s42, s12, 1\ns_lshr_b32 s43, s13, 2\ns_add_u32 s42, s42, s43\ns_lshl_b32 s42, s42, 9\ns_add_u32 s42, s42, {F3}', 24)
    Q = 24; K = 48; S = 120; P = 24; O = 48; L = 96; ONE = 168; F = 104
    A.label('p4_re')
    ldrun(lambda i: vr(Q+4*i, 4), 6, 50, QF, ' sc1'); ldrun(lambda i: vr(K+4*i, 4), 6, 52, KF, ' sc1')
    A(f's_add_u32 s42, s52, {KF+6144}')
    for u in range(2):
        for j in range(3): A(f'buffer_load_dwordx4 {vr(K+24+12*u+4*j,4)}, v9, s[20:23], s42 offen offset:{j*1024+u*64} sc1')
    ldrun(lambda i: vr(K+48+4*i, 4), 6, 52, KF+12288, ' sc1'); ldrun(w37, 18, 52, VF, ' sc1')
    for i in range(4): A(f'v_mov_b32 v{ONE+i}, 0x3f803f80')
    A(f's_mov_b32 s53, {hx(f2u(SC))}\ns_lshl_b32 s42, s3, 9\nv_add_u32 v8, s42, v5')
    for kt in range(6):
        A(f's_waitcnt vmcnt({18+3*(5-kt)})')
        for j in range(3):
            for a in range(2): A(mfma32(S+(a*6+kt)*4, K+(kt*3+j)*4, Q+(a*3+j)*4, '0' if j == 0 else None))
        if QP: chain(7, [K+(kt*3+j)*4 for j in range(3)] + [Q+4*kt], kt == 0)
    if QP: check(7, 'p4_re')
    stamp()
    w48(WF_PS)
    for b in range(3): A(f's_lshl_b32 s{77+b}, s{77+b}, 2')
    def w7(b): ldrun(lambda i: w37(b*12+i), 12, 77+b, WF_2)
    for a in range(2):
        b = S+a*24
        A(f'v_max3_f32 v{10+a}, v{b}, v{b+1}, v{b+2}')
        for i in range(3, 23, 2): A(f'v_max3_f32 v{10+a}, v{10+a}, v{b+i}, v{b+i+1}')
        A(f'v_max_f32 v{10+a}, v{10+a}, v{b+23}')
        red_g(A, 10+a, 6, 'v_max_f32')
        A(f'ds_write_b32 v8, v{10+a} offset:{256*a}')
    A('s_waitcnt lgkmcnt(0)\ns_barrier')
    for a in range(2):
        for w in range(4): A(f'ds_read_b32 v{K+4*a+w}, v5 offset:{512*w+256*a}')
    A('s_waitcnt vmcnt(9)')
    only(1, lambda: poison('h', 112), True); only(0, lambda: poison('y', 112))
    A('s_waitcnt lgkmcnt(0)')
    for a in range(2):
        A(f'v_max3_f32 v{10+a}, v{K+4*a}, v{K+4*a+1}, v{K+4*a+2}\nv_max_f32 v{10+a}, v{10+a}, v{K+4*a+3}\nv_mul_f32 v{10+a}, s53, v{10+a}')
    for a in range(2):
        b = S+a*24
        for i in range(24): A(f'v_fma_f32 v{b+i}, v{b+i}, s53, -v{10+a}')
        for i in range(24): A(f'v_exp_f32 v{b+i}, v{b+i}')
        A('s_nop 0')
        for i in range(12): A(f'v_cvt_pk_bf16_f32 v{P+a*12+i}, v{b+2*i}, v{b+2*i+1}')
    A('s_nop 1')
    if QP: A('s_branch p4_v'); A.label('p4v_re'); ldrun(w37, 18, 52, VF, ' sc1'); A('s_waitcnt vmcnt(0)')
    A.label('p4_v')
    for kp in range(3):
        if QP:
            for i in range(6): A(f'v_accvgpr_read_b32 v{F+i}, a{4*(kp*6+i)}')
            chain(7, range(F, F+6), kp == 0)
        for a in range(2):
            for dt in range(6): A(mfma32(O+(a*6+dt)*4, w37(kp*6+dt), P+(a*3+kp)*4, '0' if kp == 0 else None))
            A(mfma32(L+4*a, ONE, P+(a*3+kp)*4, '0' if kp == 0 else None))
    if QP: check(7, 'p4v_re')
    stamp()
    def w6c(): ldrun(lambda i: w6(24+i), 12, 82, WF_1)
    only(1, w6c)
    A('s_mul_i32 s42, s3, 12288\ns_add_u32 s42, s42, 4096\nv_add_u32 v6, s42, v1\ns_mul_i32 s42, s3, 3072\ns_add_u32 s42, s42, 4096\ns_lshl_b32 s43, s65, 10\ns_add_u32 s43, s43, s42\nv_add_u32 v7, s43, v1\ns_lshl_b32 s43, s67, 10\ns_add_u32 s43, s43, s42\nv_add_u32 v10, s43, v1')
    A('s_lshr_b32 s54, s3, 1\ns_lshl_b32 s42, s54, 8\nv_add_u32 v9, s42, v5\ns_nop 2')
    for i in range(12): A(f'ds_write_b128 v6, {vr(O+4*i,4)} offset:{1024*i}')
    for a in range(2): A(f'ds_write_b32 v8, v{L+4*a} offset:{2048+256*a}')
    a4()
    A('s_waitcnt lgkmcnt(0)\ns_barrier\ns_cmp_gt_u32 s51, s54\ns_cbranch_scc1 p4_fin')
    for w in range(4): A(f'ds_read_b32 v{12+w}, v9 offset:{2048+512*w}')
    for w in range(4):
        for i in range(3): A(f'ds_read_b128 {vr(F+(w*3+i)*4,4)}, v{7 if i < 2 else 10} offset:{w*12288+(i&1)*1024}')
    A('s_waitcnt lgkmcnt(12)\nv_add_f32 v12, v12, v13\nv_add_f32 v14, v14, v15\nv_add_f32 v12, v12, v14\nv_rcp_f32 v12, v12\ns_nop 0\nv_mov_b32 v13, v12\ns_waitcnt lgkmcnt(0)')
    for i in range(6):
        A(f'v_pk_add_f32 {vr(F+2*i,2)}, {vr(F+2*i,2)}, {vr(F+12+2*i,2)}\nv_pk_add_f32 {vr(F+24+2*i,2)}, {vr(F+24+2*i,2)}, {vr(F+36+2*i,2)}')
    for i in range(6):
        A(f'v_pk_add_f32 {vr(F+2*i,2)}, {vr(F+2*i,2)}, {vr(F+24+2*i,2)}\nv_pk_mul_f32 {vr(F+2*i,2)}, {vr(F+2*i,2)}, v[12:13]\nv_cvt_pk_bf16_f32 v{P+i}, v{F+2*i}, v{F+2*i+1}')
    A(f'buffer_store_dwordx4 {vr(P,4)}, v1, s[20:23], s56 offen sc1')
    half1(P+4, 's57')
    A.label('p4_fin')
    signal('s_add_u32 s42, s46, 4096')
    only(1, w6c, True)
    wait('s_add_u32 s42, s45, 4096', 8, 1)
    A.label('p5_re'); a48(OS, ' sc1')
    g48('p5', 3, lambda i: WK+4*i, lambda i: W25+4*i, 0, X2, ST2, None, lambda: w7(2))
    signal('s_add_u32 s42, s46, 8192')
    only(3, lambda: w7(2), True)
    wait('s_add_u32 s42, s45, 8192', 8, 3)
    def pf7(b, j):
        if b < 2: ld1(w37(b*12+j), 77+b, WF_2, j)
    def epi6(main):
        lnT(TAB6); main(False); stamp()
        c1 = -2*0.7978845608028654*1.4426950408889634
        A(f's_mov_b32 s60, {hx(f2u(c1*0.044715))}\ns_mov_b32 s61, s60\nv_mov_b32 v10, {hx(f2u(c1))}\nv_mov_b32 v11, v10')
        a6()
        def gelu(a):
            r0 = ACC+a*12; t0 = 132
            for i in range(6):
                r = r0+2*i; t = t0+2*i
                A(f'v_pk_mul_f32 {vr(t,2)}, {vr(r,2)}, {vr(r,2)}\nv_pk_fma_f32 {vr(t,2)}, {vr(t,2)}, s[60:61], v[10:11]\nv_pk_mul_f32 {vr(t,2)}, {vr(t,2)}, {vr(r,2)}')
            for i in range(12): A(f'v_exp_f32 v{t0+i}, v{t0+i}')
            for i in range(12): A(f'v_add_f32 v{t0+i}, 1.0, v{t0+i}')
            for i in range(12): A(f'v_rcp_f32 v{t0+i}, v{t0+i}')
            for i in range(6): A(f'v_pk_mul_f32 {vr(r0+2*i,2)}, {vr(r0+2*i,2)}, {vr(t0+2*i,2)}')
        storesT(gelu, 49152)
    g192('p6', X2, ST2, TAB6, w6, pf7, epi6)
    signal('s_add_u32 s42, s46, 12288')
    A('s_lshl_b32 s47, s16, 2')
    wait('s_add_u32 s42, s45, 12288', 8)
    A.label('p7_re')
    for a in range(3): A(f's_add_u32 s{32+a}, s47, {HID + a*49152}')
    for j in range(12):
        for a in range(3): A(f'buffer_load_dwordx4 {vr(WK+(j*3+a)*4,4)}, v1, s[20:23], s{32+a} offen offset:{(j%4)*1024} sc1')
        if j % 4 == 3 and j < 11:
            for a in range(3): A(f's_add_u32 s{32+a}, s{32+a}, 4096')
    g48('p7', 12, lambda i: WK+4*i, w37, 0, 'out', None)
    if STAMPS:
        A('s_waitcnt vmcnt(0)'); stamp()
        A(f's_cmp_lg_u32 s3, {SW}\ns_cbranch_scc1 kb_end\ns_lshl_b32 s42, s2, 7\ns_add_u32 s42, s42, {STAMP+256*128}\ns_mov_b64 exec, 0x7fffffff\nbuffer_store_dword v22, v5, s[20:23], s42 offen')
        print('nstamps', nst[0])
    A.label('kb_end'); A('s_endpgm')
    return A.text(), 512, LDSB, 256, 256
```

```python
from common import *
LOG2E = 1.4426950408889634
SC = 96 ** -0.5 * LOG2E
NH = 52
def phase1(A, stamp, wait, nst, LW, poison, EARLY, only):
    SLP = int(os.environ.get('SLP', '24'))
    A(f's_and_b32 s55, s2, 1\ns_lshl_b32 s55, s55, 7\nv_mov_b32 v18, {LW}\nv_mov_b32 v24, 0\nds_write_b32 v18, v24\ns_sub_u32 s36, s2, 192')
    A('s_cmp_ge_u32 s2, 192\ns_cbranch_scc1 p1_helper')
    NS = 5; XR = 24; XU = 48; PB = 24; ACC = 144; XF = 72; RG = 96; QK = 24576
    A.srd(56, 86, 384*2304)
    A('s_and_b32 s36, s2, 7\ns_lshr_b32 s37, s36, 1\ns_and_b32 s36, s36, 1\ns_lshr_b32 s35, s2, 3\ns_lshl_b32 s35, s35, 1\ns_add_u32 s35, s35, s36\ns_lshl_b32 s36, s35, 3')
    A('v_lshrrev_b32 v6, 3, v0\ns_lshl_b32 s42, s3, 3\nv_add_u32 v6, s42, v6')
    A('v_and_b32 v7, 3, v6\nv_mul_u32_u24 v7, 384, v7\nv_lshrrev_b32 v8, 2, v6\nv_add3_u32 v7, v7, v8, s36\nv_mul_u32_u24 v7, 768, v7')
    A('v_and_b32 v8, 7, v0\nv_lshl_add_u32 v7, v8, 4, v7')
    for i in range(6): A(f'buffer_load_dwordx4 {vr(XR+4*i,4)}, v7, s[24:27], 0 offen offset:{128*i}')
    A('v_mul_u32_u24 v10, 18432, v2\nv_mul_u32_u24 v11, 12, v3\nv_add_u32 v10, v10, v11\nv_add_u32 v11, 4608, v10\nv_add_u32 v12, 9216, v10\nv_add_u32 v13, 13824, v10')
    A('s_mul_i32 s47, s37, 192\ns_mul_i32 s48, s3, 768\ns_add_u32 s47, s47, s48\ns_lshr_b32 s33, s2, 3\ns_cmp_ge_u32 s33, 12\ns_cselect_b32 s34, 12, 0\ns_sub_u32 s33, s33, s34\ns_lshl_b32 s34, s33, 10\ns_mul_i32 s33, s33, 73728\ns_mov_b32 s60, 0x05040100\ns_mov_b32 s61, 0x07060302')
    def wld(j, e):
        if e == 0: A('s_add_u32 s48, s47, s33\ns_add_u32 s33, s33, 73728\ns_cmp_eq_u32 s33, 884736\ns_cselect_b32 s33, 0, s33')
        A(f'buffer_load_dwordx3 {vr(RG+(j%NS)*32+4*e,3)}, v{10+e//2}, s[56:59], s48 offen offset:{(e&1)*2304}')
    A('v_lshrrev_b32 v7, 4, v6\nv_mul_u32_u24 v7, 12288, v7\nv_lshrrev_b32 v14, 2, v8\nv_lshl_add_u32 v7, v14, 10, v7')
    A('v_and_b32 v14, 3, v8\nv_lshl_add_u32 v7, v14, 8, v7\nv_and_b32 v14, 15, v6\nv_lshl_add_u32 v7, v14, 4, v7')
    def red8(x):
        return [f's_nop 1\nv_add_f32_dpp v{x}, v{x}, v{x} {m} row_mask:0xf bank_mask:0xf' for m in ('quad_perm:[1,0,3,2]', 'quad_perm:[2,3,0,1]', 'row_half_mirror')]
    ln = []
    for i in range(24): ln.append(f'v_lshlrev_b32 v{XU+2*i}, 16, v{XR+i}\nv_and_b32 v{XU+1+2*i}, 0xffff0000, v{XR+i}')
    ln.append(f'v_pk_add_f32 v[14:15], {vr(XU,2)}, {vr(XU+2,2)}\nv_pk_add_f32 v[16:17], {vr(XU+4,2)}, {vr(XU+6,2)}')
    for i in range(4, 24): ln.append(f'v_pk_add_f32 {vr(14+2*(i&1),2)}, {vr(14+2*(i&1),2)}, {vr(XU+2*i,2)}')
    ln.append('v_pk_add_f32 v[14:15], v[14:15], v[16:17]\nv_add_f32 v14, v14, v15'); ln += red8(14)
    ln.append(f'v_mul_f32 v14, {hx(f2u(-1.0/384))}, v14\nv_mov_b32 v15, v14')
    for i in range(24): ln.append(f'v_pk_add_f32 {vr(XU+2*i,2)}, {vr(XU+2*i,2)}, v[14:15]')
    ln.append(f'v_pk_mul_f32 v[14:15], {vr(XU,2)}, {vr(XU,2)}\nv_pk_mul_f32 v[16:17], {vr(XU+2,2)}, {vr(XU+2,2)}')
    for i in range(2, 24): ln.append(f'v_pk_fma_f32 {vr(14+2*(i&1),2)}, {vr(XU+2*i,2)}, {vr(XU+2*i,2)}, {vr(14+2*(i&1),2)}')
    ln.append('v_pk_add_f32 v[14:15], v[14:15], v[16:17]\nv_add_f32 v14, v14, v15'); ln += red8(14)
    ln.append(f'v_mov_b32 v15, {hx(f2u(1e-5))}\nv_fmac_f32 v15, {hx(f2u(1.0/384))}, v14\nv_rsq_f32 v14, v15\ns_nop 0\nv_mov_b32 v15, v14')
    for i in range(24):
        ln.append(f'v_pk_mul_f32 {vr(XU+2*i,2)}, {vr(XU+2*i,2)}, v[14:15]\nv_cvt_pk_bf16_f32 v{XR+i}, v{XU+2*i}, v{XU+1+2*i}')
        if i % 4 == 3: ln.append(f'ds_write_b128 v7, {vr(XR+i-3,4)} offset:{2048*(i//4)}')
    N0 = int(os.environ.get('N0', '3'))
    A(f'v_bfe_u32 v20, v0, 2, 2\ns_mov_b32 s49, {hx(f2u(SC))}')
    A('v_and_b32 v21, 3, v0\nv_mul_u32_u24 v21, 0x48000, v21\nv_lshl_add_u32 v21, v2, 8, v21\nv_lshl_add_u32 v21, v20, 4, v21')
    A(f's_lshr_b32 s50, s36, 4\ns_mul_i32 s50, s50, 12\ns_mul_i32 s51, s37, 3\ns_add_u32 s50, s50, s51\ns_lshl_b32 s50, s50, 10')
    A(f's_and_b32 s51, s36, 15\ns_lshl_b32 s51, s51, 4\ns_add_u32 s50, s50, s51\ns_add_u32 s50, s50, {OT}')
    A(f's_mul_i32 s51, s35, 43\ns_lshr_b32 s51, s51, 8\ns_mul_i32 s52, s51, 6\ns_sub_u32 s52, s35, s52\ns_lshl_b32 s52, s52, 2\ns_add_u32 s52, s52, s37\n{wmap(52, 53)}\ns_lshl_b32 s51, s51, 9\ns_add_u32 s51, s51, s52\ns_add_u32 s51, s51, {FO}')
    A('s_cmp_eq_u32 s3, 3\ns_cbranch_scc1 p1_ln3')
    for j in range(N0):
        for e in range(8): wld(j, e)
    A(f's_waitcnt vmcnt({8*N0})')
    stamp()
    rest = [(j, e) for j in range(N0, NS) for e in range(8)]
    step = max(1, len(ln) // (len(rest) + 1)) if rest else 0
    for i, t in enumerate(ln):
        A(t)
        if rest and i % step == step-1: wld(*rest.pop(0))
    assert not rest
    A('s_waitcnt lgkmcnt(0)\ns_barrier')
    stamp()
    def xrd(j):
        A('v_add_u32 v6, s34, v1\ns_add_u32 s34, s34, 1024\ns_cmp_eq_u32 s34, 12288\ns_cselect_b32 s34, 0, s34')
        for tb in range(2): A(f'ds_read_b128 {vr(XF+(j&1)*8+4*tb,4)}, v6 offset:{tb*12288}')
    def perm(j, c):
        for p in range(4):
            b = RG+(j%NS)*32
            A(f'v_perm_b32 v{PB+(j&1)*24+4*c+p}, v{b+4*(2*p+1)+c//2}, v{b+4*(2*p)+c//2}, s{60+(c&1)}')
    def main(swap, ex=0):
        xrd(0)
        A(f's_waitcnt vmcnt({8*(NS-1)+ex})')
        for c in range(6): perm(0, c)
        for j in range(12):
            if j < 11: xrd(j+1)
            if j+NS < 12:
                for e in range(8): wld(j+NS, e)
            if j < 11: A(f's_waitcnt vmcnt({8*(min(11, j+NS)-(j+1))+(ex if j+1 < NS else 0)}) lgkmcnt(2)')
            else: A('s_waitcnt lgkmcnt(0)')
            for c in range(6):
                for tb in range(2):
                    d = ar(ACC+(tb*6+c)*4); w = PB+(j&1)*24+4*c; x = XF+(j&1)*8+4*tb; cc = '0' if j == 0 else None
                    A(mfma32(d, x, w, cc) if swap else mfma32(d, w, x, cc))
                if j < 11: perm(j+1, c)
        A('s_nop 7')
        for i in range(48): A(f'v_accvgpr_read_b32 v{RG+i}, a{ACC+i}')
        for i in range(24): A(f'v_cvt_pk_bf16_f32 v{PB+i}, v{RG+2*i}, v{RG+2*i+1}')
    A('s_cmp_eq_u32 s3, 2\ns_cbranch_scc1 p1_v')
    main(False)
    A(f's_mul_i32 s42, s3, 6144\ns_add_u32 s42, s42, {QK}\nv_add_u32 v6, s42, v1')
    for i in range(6): A(f'ds_write_b128 v6, {vr(PB+4*i,4)} offset:{1024*i}')
    A('s_waitcnt lgkmcnt(0)\ns_barrier\ns_branch p1_spin')
    A.label('p1_v')
    main(True)
    stamp()
    A('v_cmp_eq_u32 vcc, v20, v2')
    A('s_barrier')
    F = 72; S = 120; O = 136
    for i in range(6):
        for m in range(2): A(f'ds_read_b128 {vr(F+(i*2+m)*4,4)}, v1 offset:{QK+m*6144+1024*i}')
    for tb in range(2):
        A(f's_waitcnt lgkmcnt({6*(1-tb)})')
        for j in range(3): A(mfma32(S+8*tb, F+((tb*3+j)*2+1)*4, F+((tb*3+j)*2)*4, '0' if j == 0 else None))
    A('s_nop 4')
    for tb in range(2):
        b = S+8*tb
        A(f'v_max3_f32 v{b+4}, v{b}, v{b+1}, v{b+2}\nv_max_f32 v{b+4}, v{b+4}, v{b+3}')
        for i in range(4): A(f'v_sub_f32 v{b+i}, v{b+i}, v{b+4}\nv_mul_f32 v{b+i}, s49, v{b+i}\nv_exp_f32 v{b+i}, v{b+i}')
        A(f's_nop 0\nv_add_f32 v{b+4}, v{b}, v{b+1}\nv_add_f32 v{b+5}, v{b+2}, v{b+3}\nv_add_f32 v{b+4}, v{b+4}, v{b+5}\nv_rcp_f32 v{b+4}, v{b+4}\ns_nop 0')
        A(f'v_cndmask_b32 v{b+4}, 0, v{b+4}, vcc')
        for i in range(4): A(f'v_mul_f32 v{b+i}, v{b+i}, v{b+4}')
        A(f'v_cvt_pk_bf16_f32 v{b+6}, v{b}, v{b+1}\nv_cvt_pk_bf16_f32 v{b+7}, v{b+2}, v{b+3}\ns_nop 1')
        for c in range(6): A(f'v_mfma_f32_16x16x16_bf16 {vr(O+(tb*6+c)*4,4)}, {vr(PB+tb*12+2*c,2)}, {vr(b+6,2)}, 0')
    A('s_nop 2')
    for tb in range(2):
        for j in range(3):
            for i in range(4): A(f'v_cvt_pk_bf16_f32 v{F+(tb*3+j)*4+i}, v{O+(tb*3+j)*8+2*i}, v{O+(tb*3+j)*8+2*i+1}')
            A(f'buffer_store_dwordx4 {vr(F+(tb*3+j)*4,4)}, v21, s[20:23], s50 offen offset:{64*tb+1024*j} sc1')
    A('v_mov_b32 v6, 1\nv_lshlrev_b32 v7, 12, v0\n' + 's_waitcnt vmcnt(0)\n' + 's_mov_b64 exec, 15\nbuffer_store_dword v6, v7, s[20:23], s51 offen sc1\ns_mov_b64 exec, -1')
    stamp()
    A.label('p1_spin')
    A('s_mov_b32 s43, 0x400000')
    A.label('p1_spl')
    A('ds_read_b32 v6, v18\ns_sub_u32 s43, s43, 1\ns_cbranch_scc1 p2_pre\ns_waitcnt lgkmcnt(0)\nv_cmp_ne_u32 vcc, 1, v6\ns_cbranch_vccz p2_pre\ns_sleep 1\ns_branch p1_spl')
    A.label('p1_ln3')
    A('s_waitcnt vmcnt(0)')
    for t in ln: A(t)
    A('s_waitcnt lgkmcnt(0)\ns_barrier')
    n0 = nst[0]
    A.label('p1_h3')
    wait('s_mov_b32 s42, s55', 1, 3, 8, SLP, False)
    A(f's_waitcnt lgkmcnt(0)\ns_barrier\ns_cmp_lt_u32 s2, 192\ns_cbranch_scc1 p1_pp\ns_cmp_ge_u32 s36, {NH}\ns_cbranch_scc1 p1_pp')
    A(f's_lshl_b32 s42, s36, 2\ns_add_u32 s42, s42, {HL}\nv_mov_b32 v6, 1\nv_lshlrev_b32 v7, 8, v0\ns_mov_b32 exec_hi, 0\nbuffer_store_dword v6, v7, s[20:23], s42 offen sc1\ns_mov_b64 exec, -1')
    A.label('p1_pp'); poison('x1')
    A.label('p1_poll')
    wait(f's_lshl_b32 s42, s12, 8\ns_add_u32 s42, s42, {HL}', 4, 3, 20, 2, False)
    A('v_mov_b32 v6, 1\nds_write_b32 v18, v6\ns_branch p2_pre')
    A.label('p1_helper')
    A('s_cmp_lg_u32 s2, 255\ns_cbranch_scc1 p1_nz\nv_mov_b32 v25, 0\nv_mov_b32 v26, 0\nv_mov_b32 v27, 0\ns_mul_i32 s47, s3, 18432')
    for q in range(18): A(f's_add_u32 s42, s47, {FL+q*1024}\nbuffer_store_dwordx4 v[24:27], v1, s[20:23], s42 offen sc1')
    A('s_waitcnt vmcnt(0)\ns_barrier\ns_cmp_lg_u32 s3, 2\ns_cbranch_scc1 p1_nz\nv_mov_b32 v6, 1\nv_lshlrev_b32 v7, 7, v0\ns_mov_b64 exec, 3\nbuffer_store_dword v6, v7, s[8:11], 0 offen sc1\ns_mov_b64 exec, -1')
    A.label('p1_nz')
    A(f's_cmp_eq_u32 s3, 3\ns_cbranch_scc1 p1_h3\ns_cmp_ge_u32 s2, {192+NH}\ns_cbranch_scc1 p1_hdone')
    A.label('p1_hw')
    A('v_bfe_u32 v10, v0, 2, 2\nv_and_b32 v11, 1, v2\nv_lshlrev_b32 v11, 1, v11\nv_and_b32 v8, 3, v0\nv_xor_b32 v11, v11, v8\nv_lshlrev_b32 v11, 4, v11')
    A('v_lshrrev_b32 v6, 2, v0\nv_lshlrev_b32 v6, 6, v6\nv_and_b32 v7, 1, v2\nv_lshl_add_u32 v6, v7, 5, v6\nv_lshl_add_u32 v6, v8, 3, v6\nv_xor_b32 v7, 32, v6')
    A('s_mul_i32 s36, s36, 3\ns_add_u32 s36, s36, s3')
    cases = [(0, 12, 88, 768, 384, WF_PT, 12, 0), (12, 48, 90, 2304, 384, WF_QS, 12, CS_QS), (48, 96, 94, 3072, 384, WF_1, 12, CS_1),
             (96, 108, 92, 768, 384, WF_PS, 12, 0)] + [(108+12*q, 120+12*q, 96, 768, 1536, WF_2 + q*12*KB, 48, 0) for q in range(4)]
    for ci, (lo, hi, p, ld, rows, dst, ks, cs) in enumerate(cases):
        if ci < len(cases)-1: A(f's_cmp_ge_u32 s36, {hi}\ns_cbranch_scc1 p1_c{ci+1}')
        A.srd(56, p, ld*rows)
        k0 = (ci-4)*384 if ci >= 4 else 0
        A(f's_mov_b32 s37, {ld}\ns_sub_u32 s47, s36, {lo}\ns_mov_b32 s48, {k0*ld}\ns_mov_b32 s49, {dst}\ns_mov_b32 s50, {ks*KB}\ns_mov_b32 s51, {cs}')
        if ci < len(cases)-1:
            A('s_branch p1_hgo'); A.label(f'p1_c{ci+1}')
    A.label('p1_hgo')
    A('v_lshrrev_b32 v12, 2, v0\nv_mul_lo_u32 v12, v12, s37\nv_lshl_add_u32 v13, v2, 3, v10\nv_mul_lo_u32 v13, v13, s37')
    A('s_lshl_b32 s43, s47, 6\ns_add_u32 s48, s48, s43\ns_lshl_b32 s32, s37, 4\ns_lshl_b32 s33, s37, 2\ns_lshl_b32 s34, s37, 5\ns_mov_b32 s35, s34\ns_mul_i32 s52, s3, 24576\nv_add_u32 v14, s52, v1')
    A(f's_cmp_lg_u32 s49, {WF_PT}\ns_cbranch_scc1 p1_hnat\nv_mul_u32_u24 v12, 6, v12\nv_mov_b32 v13, v12\ns_mov_b32 s32, 768\ns_mov_b32 s33, 768\ns_mov_b32 s34, 1536\ns_mov_b32 s35, {92*768}')
    A.label('p1_hnat')
    A('v_add_u32 v12, v12, v11\nv_add_u32 v13, v13, v11')
    for j in range(12):
        v = 13 if j % 3 == 1 else 12
        A(f's_add_u32 s43, s48, s{33 if j % 3 == 1 else 32}\nbuffer_load_dwordx4 {vr(132+8*j,4)}, v{v}, s[56:59], s48 offen\ns_add_u32 s48, s48, s{35 if j % 3 == 2 else 34}')
        A(f'buffer_load_dwordx4 {vr(136+8*j,4)}, v{v}, s[56:59], s43 offen')
    A('v_add_u32 v6, s52, v6\nv_add_u32 v7, s52, v7')
    A('s_lshl_b32 s53, s47, 1\ns_mul_i32 s53, s53, s50\ns_add_u32 s53, s53, s49\ns_add_u32 s54, s53, s50')
    for i in range(4): A(f'v_mov_b32 v{128+i}, 0x3f803f80')
    nst[0] = 1; stamp()
    for q in range(4):
        for i in range(6): A(f's_waitcnt vmcnt({23-i})\nds_write_b128 v14, {vr(132+4*(6*q+i),4)} offset:{1024*(6*q+i)}')
        A('s_waitcnt lgkmcnt(0)')
        for j in range(3*q, 3*q+3):
            for c in range(2):
                for hh in range(2): A(f'ds_read_b64_tr_b16 {vr(24+(j*2+c)*4+hh*2,2)}, v{6+c} offset:{j*2048+hh*1024}')
        A('s_waitcnt lgkmcnt(0)')
        for j in range(3*q, 3*q+3):
            for c in range(2):
                A(f'buffer_store_dwordx4 {vr(24+(j*2+c)*4,4)}, v1, s[20:23], s{53+c} offen offset:{(j%4)*1024} sc1')
                A(mfma32(120+4*c, 24+(j*2+c)*4, 128, '0' if j == 0 else None))
            if j % 4 == 3: A('s_add_u32 s53, s53, 4096\ns_add_u32 s54, s54, 4096')
    stamp()
    A('s_cmp_eq_u32 s51, 0\ns_cbranch_scc1 p1_hdone')
    A('s_lshl_b32 s43, s47, 7\ns_add_u32 s51, s51, s43\nv_lshlrev_b32 v10, 4, v2\nv_cmp_eq_u32 vcc, 0, v3\ns_nop 7\ns_mov_b64 exec, vcc')
    for c in range(2): A(f'buffer_store_dwordx4 {vr(120+4*c,4)}, v10, s[20:23], s51 offen offset:{64*c} sc1')
    A('s_mov_b64 exec, -1')
    A.label('p1_hdone')
    A('s_waitcnt vmcnt(0) lgkmcnt(0)\ns_barrier')
    stamp()
    A('s_branch p1_spin')
    nst[0] = n0
```

```python
from common import *
import re
from p1 import SC, phase1, NH
RES, ACC, WK, W25 = 16, 24, 60, 188
RED = 36864; TAB3 = 73728; TAB6 = TAB3 + 2048; LW = TAB6 + 2048; LDSB = LW + 64
EARLY = int(os.environ.get('EARLY', '1'))
QP = int(os.environ.get('QP', '0'))
SW = int(os.environ.get('SW', '2'))
def w37(i): return ar(4*i)
def w6(i): return ar(144+4*i) if i < 28 else vr(224+4*(i-28), 4)
def gen_km():
    A = Asm(); nst = [0]
    def stamp():
        if STAMPS:
            i = nst[0]; nst[0] += 1
            A(f's_memrealtime s[100:101]\ns_waitcnt lgkmcnt(0)\nv_writelane_b32 v22, s100, {i}')
    A('s_cmp_ge_u32 s2, 256\ns_cbranch_scc1 kb_end')
    stamp()
    A('s_load_dwordx16 s[84:99], s[0:1], 0\ns_load_dwordx4 s[4:7], s[0:1], 64')
    A('v_mov_b32 v9, v0\nv_lshrrev_b32 v1, 6, v0\nv_and_b32 v0, 63, v0\ns_and_b32 s10, s2, 7\nv_readfirstlane_b32 s3, v1')
    A('s_lshr_b32 s11, s2, 3\ns_lshl_b32 s12, s10, 2\ns_and_b32 s13, s11, 3\ns_add_u32 s12, s12, s13\ns_lshr_b32 s13, s11, 2')
    A('v_lshlrev_b32 v1, 4, v0\nv_lshrrev_b32 v2, 4, v0\nv_and_b32 v3, 15, v0\nv_lshlrev_b32 v5, 2, v0')
    A('s_mul_i32 s14, s12, 3\ns_mul_i32 s15, s13, 3\ns_add_u32 s19, s14, s3')
    A('s_and_b32 s68, s13, 1\ns_and_b32 s69, s3, 1')
    for p, o in ((68, 62), (69, 65)):
        A(f's_mov_b32 s{o}, s{p}\ns_add_u32 s{o+1}, s{p}, 1\ns_cmp_eq_u32 s{p}, 1\ns_cselect_b32 s{o+2}, 0, 2')
    A('s_lshr_b32 s42, s13, 1\ns_mul_i32 s42, s42, 3\ns_mul_i32 s38, s19, 12\ns_add_u32 s38, s38, s42\ns_lshl_b32 s38, s38, 10\ns_lshl_b32 s42, s68, 9\ns_add_u32 s39, s38, s42\ns_add_u32 s39, s39, 1024\ns_lshl_b32 s42, s68, 11\ns_add_u32 s38, s38, s42')
    A('s_lshl_b32 s70, s69, 11\ns_lshl_b32 s71, s69, 9\ns_add_u32 s71, s71, 1024\ns_mov_b32 s72, 0xffff\ns_mov_b32 s73, 0xffff')
    A('v_lshrrev_b32 v23, 1, v2\nv_lshl_add_u32 v23, v23, 4, v3\nv_lshlrev_b32 v23, 4, v23')
    A('v_mul_u32_u24 v4, 768, v3\nv_lshl_add_u32 v4, v2, 3, v4\ns_mul_i32 s41, s19, 12288\ns_lshl_b32 s42, s15, 5\ns_add_u32 s41, s41, s42')
    for b in range(3): A(f's_lshl_b32 s42, s{62+b}, 5\ns_add_u32 s{74+b}, s41, s42')
    A('s_mul_i32 s16, s14, 12288\ns_mul_i32 s17, s3, 3072\ns_add_u32 s16, s16, s17')
    A('s_mul_i32 s18, s15, 12288\ns_add_u32 s18, s18, s17')
    A('s_lshl_b32 s44, s13, 2\ns_add_u32 s44, s44, s3\ns_mul_i32 s44, s44, 36864')
    for b in range(3): A(f's_mul_i32 s42, s{62+b}, 12288\ns_add_u32 s{77+b}, s18, s42\ns_mul_i32 s42, s{65+b}, 12288\ns_add_u32 s{80+b}, s44, s42')
    A(f's_lshl_b32 s45, s12, 7\ns_add_u32 s45, s45, {FL}\ns_mov_b32 s46, s13\n{wmap(46, 42)}\ns_add_u32 s46, s46, s45')
    A('s_mov_b32 s40, 0x4000\ns_waitcnt lgkmcnt(0)')
    A.srd(20, 6, WS_USED); A.srd(24, 84, 1536*768); A.srd(28, 98, 1536*768); A.srd(8, 4, 256)
    def ldrun(dst, n, base, const, sc=''):
        for i in range(n):
            if i % 4 == 0: A(f's_add_u32 s42, s{base}, {const + i*1024}')
            A(f'buffer_load_dwordx4 {dst(i)}, v1, s[20:23], s42 offen offset:{(i%4)*1024}{sc}')
    def ld1(dst, base, const, i, sc=''):
        A(f's_add_u32 s42, s{base}, {const + i*1024}\nbuffer_load_dwordx4 {dst}, v1, s[20:23], s42 offen{sc}')
    def half1(d, soff):
        A(f'v_mov_b32 v{d+2}, v{d}\nv_mov_b32 v{d+3}, v{d+1}\ns_nop 1\nv_permlane16_swap_b32 v{d}, v{d+2}\nv_permlane16_swap_b32 v{d+1}, v{d+3}')
        A(f's_mov_b64 exec, s[72:73]\nbuffer_store_dwordx4 {vr(d,4)}, v23, s[20:23], {soff} offen sc1\ns_mov_b64 exec, -1')
    def half2(d, va, soff):
        A(f's_nop 1\nv_permlane16_swap_b32 v{d}, v{d+2}\nv_permlane16_swap_b32 v{d+1}, v{d+3}\nbuffer_store_dwordx4 {vr(d,4)}, v{va}, s[20:23], {soff} offen sc1')
    def signal(soff_expr, n=0, rep=1, sh=8, EARLY=EARLY):
        A('s_barrier' if EARLY else f's_waitcnt vmcnt({n})\ns_barrier')
        stamp()
        l = f'kb_s{nst[0]}_{len(A.l)}'
        A(f's_cmp_lg_u32 s3, 0\ns_cbranch_scc1 {l}\n{soff_expr}\ns_mov_b64 exec, {(1<<rep)-1}\nv_mov_b32 v6, 1\nv_lshlrev_b32 v7, {sh}, v0\nbuffer_store_dword v6, v7, s[20:23], s42 offen sc1\ns_mov_b64 exec, -1')
        A.label(l)
    def wait(soff_expr, n, wv=0, srd=20, slp=0, bar=True, val='1'):
        l = f'kb_w{len(A.l)}'
        A(f's_cmp_lg_u32 s3, {wv}\ns_cbranch_scc1 {l}_d\n{soff_expr}\nv_lshrrev_b32 v7, 3, v0\nv_lshlrev_b32 v7, 7, v7\nv_and_b32 v6, 7, v0\nv_lshl_add_u32 v7, v6, 2, v7\ns_mov_b32 s43, 0x40000\ns_mov_b32 exec_lo, {hx((1<<n)-1)}\ns_mov_b32 exec_hi, {hx(((1<<n)-1)>>32)}')
        A.label(l)
        A(f'buffer_load_dword v6, v{7 if n == 24 else 5}, s[{srd}:{srd+3}], s42 offen sc1\ns_sub_u32 s43, s43, 1\ns_cbranch_scc1 {l}_x\ns_waitcnt vmcnt(0)\nv_cmp_ne_u32 vcc, {val}, v6\n' + (f's_cbranch_vccz {l}_x\ns_sleep {slp}\ns_branch {l}' if slp else f's_cbranch_vccnz {l}'))
        A.label(l + '_x'); A('s_mov_b64 exec, -1')
        A.label(l + '_d')
        if bar: A('s_barrier'); stamp()
    def chain(t, regs, first):
        regs = list(regs)
        if first: A(f'v_max_u32 v{t}, v{regs[0]}, v{regs[1]}'); regs = regs[2:]
        while len(regs) > 1: A(f'v_max3_u32 v{t}, v{t}, v{regs[0]}, v{regs[1]}'); regs = regs[2:]
        if regs: A(f'v_max_u32 v{t}, v{t}, v{regs[0]}')
    def check(t, lbl):
        A(f'v_cmp_eq_u32 vcc, -1, v{t}\ns_cbranch_vccz {lbl}_ok\ns_sub_u32 s40, s40, 1\ns_cbranch_scc0 {lbl}\ns_mov_b32 s40, 0')
        A.label(lbl + '_ok')
    def st16(d, va, soff, half=False):
        if half: A('s_mov_b64 exec, s[72:73]')
        A(f'buffer_store_dwordx4 {vr(d,4)}, v{va}, s[20:23], {soff} offen sc1')
        if half: A('s_mov_b64 exec, -1')
    def stat_store(T, st):
        A(f'v_lshlrev_b32 v6, 6, v0\ns_lshl_b32 s42, s19, 10\ns_lshl_b32 s43, s13, 3\ns_add_u32 s42, s42, s43\ns_add_u32 s42, s42, {st}')
        A(f's_mov_b64 exec, 0xffff\nbuffer_store_dwordx2 {vr(T,2)}, v6, s[20:23], s42 offen sc1\ns_mov_b64 exec, -1')
    def a3():
        A('s_lshr_b32 s47, s12, 3\ns_lshl_b32 s47, s47, 2\ns_and_b32 s48, s13, 1\ns_lshl_b32 s48, s48, 1\ns_add_u32 s47, s47, s48\ns_lshr_b32 s48, s3, 1\ns_add_u32 s47, s47, s48\ns_mul_i32 s47, s47, 73728')
        A(f's_lshr_b32 s48, s13, 1\ns_mul_i32 s48, s48, {KF-QF}\ns_add_u32 s47, s47, s48\ns_add_u32 s47, s47, {QF}\ns_and_b32 s48, s12, 7\ns_and_b32 s49, s3, 1')
    def a3qk(): A('s_mul_i32 s48, s48, 9216\ns_add_u32 s47, s47, s48\ns_add_u32 s50, s47, s70\ns_add_u32 s51, s47, s71\ns_add_u32 s52, s51, 6144\nv_and_b32 v6, 1, v2\nv_mul_u32_u24 v6, 3072, v6\nv_add_u32 v6, v6, v23')
    def a3v():
        A('s_and_b32 s83, s12, 1\ns_lshr_b32 s48, s48, 1\ns_mul_i32 s48, s48, 18432\ns_add_u32 s47, s47, s48\ns_mul_i32 s49, s49, 3072\ns_add_u32 s47, s47, s49\ns_mul_i32 s42, s83, 12288\ns_add_u32 s48, s47, s42\ns_lshl_b32 s42, s83, 9\ns_add_u32 s49, s47, s42\ns_add_u32 s49, s49, 6144')
        for b in range(3): A(f's_lshl_b32 s42, s{65+b}, 10\ns_add_u32 s{50+b}, s48, s42\ns_add_u32 s{53+b}, s49, s42')
        A('v_and_b32 v6, 1, v2\nv_lshl_add_u32 v6, v6, 10, v23')
    def a4():
        A(f's_add_u32 s55, s14, s51\ns_add_u32 s55, s55, s54\ns_mul_i32 s55, s55, 12\ns_mul_i32 s42, s48, 3\ns_add_u32 s55, s55, s42\ns_lshl_b32 s55, s55, 10\ns_add_u32 s55, s55, {OS}')
        A('s_add_u32 s56, s55, s70\ns_add_u32 s57, s55, s71')
    def a6():
        A(f's_mul_i32 s47, s14, 49152\ns_mul_i32 s48, s13, 6144\ns_add_u32 s47, s47, s48\ns_lshr_b32 s48, s3, 1\ns_mul_i32 s48, s48, 3072\ns_add_u32 s47, s47, s48\ns_add_u32 s47, s47, {HID}')
        A('s_add_u32 s50, s47, s70\ns_add_u32 s51, s47, s71\ns_add_u32 s52, s51, 98304\nv_and_b32 v6, 1, v2\nv_mul_u32_u24 v6, 49152, v6\nv_add_u32 v6, v6, v23')
    def poison(u, P=88):
        def run(base, const, n, va=1, step=1024):
            for i in range(n):
                if (i*step) % 4096 == 0: A(f's_add_u32 s42, s{base}, {const + i*step}')
                A(f'buffer_store_dwordx4 {vr(P,4)}, v{va}, s[20:23], s42 offen offset:{(i*step) % 4096} sc1')
        for i in range(4): A(f'v_mov_b32 v{P+i}, -1')
        if u[0] in 'xy':
            XX, SS = ((X1,), (ST1,)) if u[0] == 'x' else ((X2,), (ST2,))
            A('s_mul_i32 s32, s3, 12288\ns_sub_u32 s33, s38, s32\ns_sub_u32 s34, s39, s32\ns_lshl_b32 s35, s14, 10\ns_lshl_b32 s36, s13, 3\ns_add_u32 s35, s35, s36\nv_lshlrev_b32 v6, 6, v0')
            for dst in XX: run(33, dst, 3, 1, 12288)
            A('s_mov_b32 exec_hi, 0xffff')
            for st in SS: A(f's_add_u32 s42, s35, {st}\nbuffer_store_dwordx2 {vr(P,2)}, v6, s[20:23], s42 offen sc1')
            A('s_mov_b32 exec_hi, 0')
            for dst in XX: run(34, dst, 3, 1, 12288)
            A('s_mov_b64 exec, -1')
        if u[0] == 'x':
            A('s_lshl_b32 s32, s68, 1\ns_add_u32 s32, s32, s14\ns_lshl_b32 s32, s32, 2\ns_lshr_b32 s33, s13, 1\ns_add_u32 s32, s32, s33\ns_mul_i32 s32, s32, 3072')
            run(32, OS, 3)
            A(f's_cmp_eq_u32 s68, 1\ns_cbranch_scc1 po_4{u}'); run(32, OS+12288, 3)
            A.label(f'po_4{u}')
        if u[0] == 'q':
            A(f's_mov_b64 exec, -1\ns_cmp_ge_u32 s13, 6\ns_cbranch_scc1 po_3{u}')
            A(f's_lshr_b32 s32, s12, 3\ns_lshl_b32 s32, s32, 1\ns_add_u32 s32, s32, s68\ns_mul_i32 s32, s32, 147456\ns_lshr_b32 s33, s13, 1\ns_mul_i32 s33, s33, {KF-QF}\ns_add_u32 s32, s32, s33\ns_and_b32 s33, s12, 7')
            A(f's_cmp_ge_u32 s13, 4\ns_cbranch_scc1 po_2{u}\ns_mul_i32 s33, s33, 9216\ns_add_u32 s32, s32, s33')
            for hh in range(2): run(32, QF+hh*73728, 9)
            A(f's_branch po_3{u}')
            A.label(f'po_2{u}')
            A('s_lshr_b32 s34, s33, 1\ns_mul_i32 s34, s34, 18432\ns_add_u32 s32, s32, s34\ns_and_b32 s33, s33, 1\ns_lshl_b32 s34, s33, 9\ns_add_u32 s34, s34, s32\ns_mul_i32 s33, s33, 12288\ns_add_u32 s33, s33, s32')
            A('v_lshrrev_b32 v6, 5, v0\nv_lshl_add_u32 v6, v6, 9, v1')
            for hh in range(2): run(33, QF+hh*73728, 6); run(34, QF+hh*73728+6144, 3, 6, 2048)
            A.label(f'po_3{u}')
        if u[0] == 'h':
            A('s_mul_i32 s32, s14, 49152\ns_mul_i32 s33, s13, 6144\ns_add_u32 s32, s32, s33')
            A('s_max_u32 s33, s3, 1\ns_sub_u32 s33, s33, 1\ns_mul_i32 s33, s33, 49152\ns_add_u32 s32, s32, s33'); run(32, HID, 6)
    def only(w, fn, neg=False):
        l = f'on{len(A.l)}'
        A(f's_cmp_{"eq" if neg else "lg"}_u32 s3, {w}\ns_cbranch_scc1 {l}'); fn(); A.label(l)
    def g48(name, KW, a_frag, wf, nafter, dst, st, mid=None, w3=None):
        for j in range(KW):
            A(f's_waitcnt vmcnt({min(63, nafter + 3*(KW-1-j))})')
            for a in range(3):
                for b in range(3): A(mfma32(ACC+(a*3+b)*4, wf(b*KW+j), a_frag(j*3+a), '0' if j == 0 else None))
            if name != 'p2': chain(8, [a_frag(j*3+a) for a in range(3)], j == 0)
        if name != 'p2': check(8, name + '_re')
        stamp()
        if mid: mid()
        A(f's_mul_i32 s42, s3, 9216\ns_add_u32 s42, s42, {RED}\nv_add_u32 v6, s42, v1\ns_mul_i32 s42, s3, 3072\ns_add_u32 s42, s42, {RED}\nv_add_u32 v7, s42, v1\ns_nop 2')
        for i in range(9): A(f'ds_write_b128 v6, {vr(ACC+4*i,4)} offset:{1024*i}')
        A(f's_waitcnt lgkmcnt(0)\ns_barrier\ns_cmp_eq_u32 s3, 3\ns_cbranch_scc1 {name}_fin')
        for w in range(4):
            for b in range(3): A(f'ds_read_b128 {vr(WK+(w*3+b)*4,4)}, v7 offset:{w*9216+b*1024}')
        for i in range(6): A(f'v_lshlrev_b32 v{ACC+2*i}, 16, v{RES+i}\nv_and_b32 v{ACC+2*i+1}, 0xffff0000, v{RES+i}')
        for w in range(4):
            A(f's_waitcnt lgkmcnt({3*(3-w)})')
            for i in range(6): A(f'v_pk_add_f32 {vr(ACC+2*i,2)}, {vr(ACC+2*i,2)}, {vr(WK+w*12+2*i,2)}')
        for i in range(6): A(f'v_cvt_pk_bf16_f32 v{RES+i}, v{ACC+2*i}, v{ACC+2*i+1}')
        if dst == 'out':
            for b in range(3): A(f'buffer_store_dwordx2 {vr(RES+2*b,2)}, v4, s[28:31], s{74+b} offen')
        else:
            A(f's_add_u32 s42, s38, {dst}\nbuffer_store_dwordx4 {vr(RES,4)}, v1, s[20:23], s42 offen sc1\nv_mov_b32 v12, v{RES+4}\nv_mov_b32 v13, v{RES+5}\ns_add_u32 s42, s39, {dst}')
            half1(12, 's42')
        if st is not None:
            T = WK
            for i in range(6): A(f'v_lshlrev_b32 v{ACC+2*i}, 16, v{RES+i}\nv_and_b32 v{ACC+2*i+1}, 0xffff0000, v{RES+i}')
            A(f'v_pk_add_f32 {vr(T,2)}, {vr(ACC,2)}, {vr(ACC+2,2)}\nv_pk_mul_f32 {vr(T+2,2)}, {vr(ACC,2)}, {vr(ACC,2)}')
            for i in range(2, 6): A(f'v_pk_add_f32 {vr(T,2)}, {vr(T,2)}, {vr(ACC+2*i,2)}')
            for i in range(1, 6): A(f'v_pk_fma_f32 {vr(T+2,2)}, {vr(ACC+2*i,2)}, {vr(ACC+2*i,2)}, {vr(T+2,2)}')
            A(f'v_add_f32 v{T}, v{T}, v{T+1}\nv_add_f32 v{T+1}, v{T+2}, v{T+3}')
            red_g(A, T, T+4, 'v_add_f32'); red_g(A, T+1, T+4, 'v_add_f32')
            stat_store(T, st)
        A.label(f'{name}_fin')
        if w3: only(3, w3)
    def a48(off, sc):
        for a in range(3): A(f's_add_u32 s{32+a}, s16, {off + a*12288}')
        for j in range(3):
            for a in range(3): A(f'buffer_load_dwordx4 {vr(WK+(j*3+a)*4,4)}, v1, s[20:23], s{32+a} offen offset:{j*1024}{sc}')
    def w48(off):
        for b in range(3): ldrun(lambda i: vr(W25+(b*3+i)*4, 4), 3, 77+b, off)
    def g192(name, Xoff, ST, TAB, wf, prefetch, epi):
        A.label(name + '_re')
        A(f's_min_u32 s43, s3, 2\ns_add_u32 s42, s14, s43\ns_lshl_b32 s42, s42, 10\ns_add_u32 s42, s42, {ST}\nv_lshlrev_b32 v6, 6, v3\nv_lshl_add_u32 v6, v2, 4, v6')
        A('buffer_load_dwordx4 v[12:15], v6, s[20:23], s42 offen sc1')
        a48(Xoff, ' sc1')
        npf = 0
        A(f's_mul_i32 s42, s3, 9216\nv_add_u32 v6, s42, v1\ns_lshl_b32 s43, s43, 7\ns_add_u32 s43, s43, {TAB}\nv_lshl_add_u32 v7, v3, 3, s43')
        A(f's_waitcnt vmcnt({npf+9})\nv_max_u32 v8, v12, v14\nv_pk_add_f32 v[12:13], v[12:13], v[14:15]')
        red_g(A, 12, 14, 'v_add_f32'); red_g(A, 13, 14, 'v_add_f32')
        A(f'v_mul_f32 v12, {hx(f2u(1/384))}, v12\nv_mul_f32 v13, {hx(f2u(1/384))}, v13\nv_fma_f32 v13, -v12, v12, v13\nv_max_f32 v13, 0, v13\nv_add_f32 v13, {hx(f2u(1e-5))}, v13\nv_rsq_f32 v13, v13\ns_nop 0\nds_write_b64 v7, v[12:13]')
        for i in range(9): A(f's_waitcnt vmcnt({npf+8-i})\nds_write_b128 v6, {vr(WK+4*i,4)} offset:{1024*i}\nv_max_u32 v8, v8, v{WK+4*i}')
        A('s_waitcnt lgkmcnt(0)'); check(8, name + '_re'); A('s_barrier')
        stamp()
        epi(lambda swap: main192(wf, swap, prefetch))
    def main192(wf, swap, prefetch):
        FB = WK
        def rd(j):
            for a in range(3): A(f'ds_read_b128 {vr(FB+(j%3)*12+4*a,4)}, v{(13+a) if swap else 1} offset:{(j*3+(0 if swap else a))*1024}')
        rd(0); rd(1)
        for j in range(12):
            if j+2 < 12: rd(j+2)
            A(f's_waitcnt lgkmcnt({3*min(2, 11-j)})')
            for a in range(3):
                for b in range(3):
                    x = FB+(j%3)*12+4*a; w = wf(b*12+j); c = '0' if j == 0 else None
                    A(mfma32(ACC+(a*3+b)*4, x, w, c) if swap else mfma32(ACC+(a*3+b)*4, w, x, c))
                prefetch(a, j)
    def lnT(TAB):
        A(f's_mul_i32 s43, s3, 384\ns_add_u32 s43, s43, {TAB+384}\nv_lshlrev_b32 v7, 3, v3\nv_add_u32 v7, {TAB}, v7')
        for b in range(3): A(f's_lshl_b32 s42, s{65+b}, 7\ns_add_u32 s42, s42, s43\nv_lshl_add_u32 v6, v2, 5, s42\nds_read_b128 {vr(100+8*b,4)}, v6\nds_read_b128 {vr(104+8*b,4)}, v6 offset:16\nds_read_b64 {vr(124+2*b,2)}, v7 offset:{128*b}')
    def lnT_apply(a, b):
        for i in range(4):
            r = ACC+(a*3+b)*4+i
            A(f'v_fma_f32 v{r}, -v{100+8*b+2*i}, v{124+2*a}, v{r}\nv_mul_f32 v{r}, v{r}, v{125+2*a}')
    def storesT(act, stride):
        for a in range(3):
            for b in range(3): lnT_apply(a, b)
            act(a)
            r = ACC+a*12
            for i in range(4): A(f'v_cvt_pk_bf16_f32 v{WK+4*a+i}, v{r+2*i}, v{r+2*i+1}')
            A(f'buffer_store_dwordx4 {vr(WK+4*a,4)}, v1, s[20:23], s50 offen sc1')
            if a < 2: A(f's_add_u32 s50, s50, {stride}')
            for i in range(2): A(f'v_cvt_pk_bf16_f32 v{WK+12+2*a+i}, v{r+8+2*i}, v{r+9+2*i}')
            if a == 1: half2(WK+12, 6, 's51')
            if a == 2: half1(WK+16, 's52')
    phase1(A, stamp, wait, nst, LW, poison, EARLY, only)
    A.label('p2_pre')
    for b in range(3): A(f'buffer_load_dwordx2 {vr(RES+2*b,2)}, v4, s[24:27], s{74+b} offen')
    w48(WF_PT)
    A(f's_cmp_lg_u32 s3, 3\ns_cbranch_scc1 w2_d\ns_lshl_b32 s42, s12, 9\ns_add_u32 s42, s42, {FO}\ns_lshl_b32 s47, s12, 8\ns_add_u32 s47, s47, {HL}\ns_mov_b32 s43, 0x40000')
    A('v_lshrrev_b32 v7, 3, v0\nv_lshlrev_b32 v7, 7, v7\nv_and_b32 v6, 7, v0\nv_lshl_add_u32 v7, v6, 2, v7\nv_mov_b32 v6, 1')
    A.label('w2_l')
    A(f's_mov_b64 exec, 0xffffff\nbuffer_load_dword v6, v7, s[20:23], s42 offen sc1\ns_mov_b32 exec_lo, -1\ns_mov_b32 exec_hi, {hx((1<<(NH-32))-1)}\nbuffer_load_dword v8, v5, s[20:23], s47 offen sc1')
    A('s_sub_u32 s43, s43, 1\ns_cbranch_scc1 w2_x\ns_waitcnt vmcnt(0)\nv_and_b32 v8, v8, v6\nv_cmp_ne_u32 vcc, 1, v8\ns_cbranch_vccnz w2_l')
    A.label('w2_x'); A('s_mov_b64 exec, -1')
    A.label('w2_d'); A('s_barrier'); stamp()
    def p2mid():
        only(3, lambda: A('s_waitcnt vmcnt(12)\nds_write_b64 v8, v[10:11]\nds_write_b64 v8, v[14:15] offset:2048'), True)
        if QP: only(3, lambda: poison('q', 112))
        ldrun(lambda i: w37(12+i), 12, 81, WF_QS)
    def w3c(): ldrun(lambda i: w37(24+i), 12, 82, WF_QS)
    a48(OT, ' sc1')
    A(f'v_lshlrev_b32 v8, 2, v9\ns_mul_i32 s43, s13, 768\ns_add_u32 s42, s43, {CS_QS}\nbuffer_load_dword v10, v8, s[20:23], s42 offen\ns_add_u32 s42, s43, {CS_1}\nbuffer_load_dword v14, v8, s[20:23], s42 offen')
    ldrun(w37, 12, 80, WF_QS)
    A(f'v_mov_b32 v11, 1.0\nv_mov_b32 v15, 1.0\nv_lshlrev_b32 v8, 3, v9\nv_add_u32 v8, {TAB3+384}, v8')
    g48('p2', 3, lambda i: WK+4*i, lambda i: W25+4*i, 14, X1, ST1, p2mid, w3c)
    signal('s_mov_b32 s42, s46', 0)
    only(3, w3c, True)
    def pf6(b, j):
        if b < 2: ld1(w6(b*12+j), 80+b, WF_1, j)
    A('s_cmp_lt_u32 s13, 6\ns_cbranch_scc1 p3_go')
    for b in range(2): ldrun(lambda i: w6(b*12+i), 12, 80+b, WF_1)
    if STAMPS: nst[0] += 0
    A('s_branch p4_start')
    A.label('p3_go')
    wait('s_mov_b32 s42, s45', 8, 3)
    def epi3(main):
        a3()
        A('s_cmp_ge_u32 s13, 4\ns_cbranch_scc1 p3_v')
        lnT(TAB3); main(False); stamp()
        a3qk()
        storesT(lambda a: None, 3072)
        A('s_branch p3_done')
        A.label('p3_v')
        A('s_and_b32 s42, s12, 1\ns_mov_b32 s83, s42\ns_add_u32 s84, s42, 1\ns_cmp_eq_u32 s42, 1\ns_cselect_b32 s85, 0, 2')
        A(f's_mul_i32 s43, s3, 384\ns_add_u32 s43, s43, {TAB3+384}')
        for b in range(3):
            A(f's_lshl_b32 s42, s{83+b}, 10\nv_add_u32 v{13+b}, s42, v1\ns_lshl_b32 s42, s{83+b}, 7\ns_add_u32 s42, s42, {TAB3}\nv_lshl_add_u32 v6, v2, 5, s42\ns_lshl_b32 s42, s{65+b}, 7\ns_add_u32 s42, s42, s43\nv_lshl_add_u32 v7, v3, 3, s42')
            A(f'ds_read_b128 {vr(100+8*b,4)}, v6\nds_read_b128 {vr(104+8*b,4)}, v6 offset:16\nds_read_b64 {vr(124+2*b,2)}, v7')
        main(True)
        if STAMPS: nst[0] -= 1
        stamp()
        a3v()
        for b in range(3):
            for a in range(3):
                r = ACC+(a*3+b)*4; o = WK+4*b+2*a if a < 2 else WK+12+2*b
                for i in range(4): A(f'v_fma_f32 v{r+i}, -v{100+8*a+2*i}, v{124+2*b}, v{r+i}\nv_mul_f32 v{r+i}, v{r+i}, v{101+8*a+2*i}')
                A(f'v_cvt_pk_bf16_f32 v{o}, v{r}, v{r+1}\nv_cvt_pk_bf16_f32 v{o+1}, v{r+2}, v{r+3}')
            A(f'buffer_store_dwordx4 {vr(WK+4*b,4)}, v1, s[20:23], s{50+b} offen sc1')
            if b == 1: half2(WK+12, 6, 's53')
            if b == 2: half1(WK+16, 's55')
        A.label('p3_done')
    g192('p3', X1, ST1, TAB3, w37, pf6, epi3)
    signal(f's_and_b32 s42, s12, 7\ns_mul_i32 s42, s42, 3\ns_lshr_b32 s43, s13, 1\ns_add_u32 s42, s42, s43\n{wmap(42, 43)}\ns_lshr_b32 s43, s12, 3\ns_lshl_b32 s43, s43, 4\ns_add_u32 s43, s43, s68\ns_lshl_b32 s43, s43, 9\ns_add_u32 s42, s42, s43\ns_add_u32 s42, s42, {F3}', 0, 8, 10, QP)
    A.label('p4_start')
    A(f's_lshr_b32 s47, s12, 3\ns_lshl_b32 s47, s47, 2\ns_lshr_b32 s48, s13, 1\ns_add_u32 s47, s47, s48\ns_mul_i32 s49, s47, 73728')
    A(f's_and_b32 s50, s12, 7\ns_mul_i32 s50, s50, 3\ns_and_b32 s51, s13, 1\ns_add_u32 s50, s50, s51\ns_mul_i32 s50, s50, 3072\ns_add_u32 s50, s50, s49')
    A(f's_mul_i32 s52, s3, 18432\ns_add_u32 s52, s52, s49')
    A('v_lshrrev_b32 v9, 3, v3\nv_mul_u32_u24 v9, 3072, v9\nv_lshl_add_u32 v9, v2, 8, v9\nv_bfe_u32 v6, v3, 2, 1\nv_lshl_add_u32 v9, v6, 7, v9\nv_and_b32 v6, 3, v3\nv_lshl_add_u32 v9, v6, 4, v9')
    wait(f's_lshl_b32 s42, s12, 1\ns_lshr_b32 s43, s13, 2\ns_add_u32 s42, s42, s43\ns_lshl_b32 s42, s42, 9\ns_add_u32 s42, s42, {F3}', 24)
    Q = 24; K = 48; S = 120; P = 24; O = 48; L = 96; ONE = 168; F = 104
    A.label('p4_re')
    ldrun(lambda i: vr(Q+4*i, 4), 6, 50, QF, ' sc1'); ldrun(lambda i: vr(K+4*i, 4), 6, 52, KF, ' sc1')
    A(f's_add_u32 s42, s52, {KF+6144}')
    for u in range(2):
        for j in range(3): A(f'buffer_load_dwordx4 {vr(K+24+12*u+4*j,4)}, v9, s[20:23], s42 offen offset:{j*1024+u*64} sc1')
    ldrun(lambda i: vr(K+48+4*i, 4), 6, 52, KF+12288, ' sc1'); ldrun(w37, 18, 52, VF, ' sc1')
    for i in range(4): A(f'v_mov_b32 v{ONE+i}, 0x3f803f80')
    A(f's_mov_b32 s53, {hx(f2u(SC))}\ns_lshl_b32 s42, s3, 9\nv_add_u32 v8, s42, v5')
    for kt in range(6):
        A(f's_waitcnt vmcnt({18+3*(5-kt)})')
        for j in range(3):
            for a in range(2): A(mfma32(S+(a*6+kt)*4, K+(kt*3+j)*4, Q+(a*3+j)*4, '0' if j == 0 else None))
        if QP: chain(7, [K+(kt*3+j)*4 for j in range(3)] + [Q+4*kt], kt == 0)
    if QP: check(7, 'p4_re')
    stamp()
    w48(WF_PS)
    for b in range(3): A(f's_lshl_b32 s{77+b}, s{77+b}, 2')
    def w7(b): ldrun(lambda i: w37(b*12+i), 12, 77+b, WF_2)
    for a in range(2):
        b = S+a*24
        A(f'v_max3_f32 v{10+a}, v{b}, v{b+1}, v{b+2}')
        for i in range(3, 23, 2): A(f'v_max3_f32 v{10+a}, v{10+a}, v{b+i}, v{b+i+1}')
        A(f'v_max_f32 v{10+a}, v{10+a}, v{b+23}')
        red_g(A, 10+a, 6, 'v_max_f32')
        A(f'ds_write_b32 v8, v{10+a} offset:{256*a}')
    A('s_waitcnt lgkmcnt(0)\ns_barrier')
    for a in range(2):
        for w in range(4): A(f'ds_read_b32 v{K+4*a+w}, v5 offset:{512*w+256*a}')
    A('s_waitcnt vmcnt(9)')
    only(1, lambda: poison('h', 112), True); only(0, lambda: poison('y', 112))
    A('s_waitcnt lgkmcnt(0)')
    for a in range(2):
        A(f'v_max3_f32 v{10+a}, v{K+4*a}, v{K+4*a+1}, v{K+4*a+2}\nv_max_f32 v{10+a}, v{10+a}, v{K+4*a+3}\nv_mul_f32 v{10+a}, s53, v{10+a}')
    for a in range(2):
        b = S+a*24
        for i in range(24): A(f'v_fma_f32 v{b+i}, v{b+i}, s53, -v{10+a}')
        for i in range(24): A(f'v_exp_f32 v{b+i}, v{b+i}')
        A('s_nop 0')
        for i in range(12): A(f'v_cvt_pk_bf16_f32 v{P+a*12+i}, v{b+2*i}, v{b+2*i+1}')
    A('s_nop 1')
    if QP: A('s_branch p4_v'); A.label('p4v_re'); ldrun(w37, 18, 52, VF, ' sc1'); A('s_waitcnt vmcnt(0)')
    A.label('p4_v')
    for kp in range(3):
        if QP:
            for i in range(6): A(f'v_accvgpr_read_b32 v{F+i}, a{4*(kp*6+i)}')
            chain(7, range(F, F+6), kp == 0)
        for a in range(2):
            for dt in range(6): A(mfma32(O+(a*6+dt)*4, w37(kp*6+dt), P+(a*3+kp)*4, '0' if kp == 0 else None))
            A(mfma32(L+4*a, ONE, P+(a*3+kp)*4, '0' if kp == 0 else None))
    if QP: check(7, 'p4v_re')
    stamp()
    def w6c(): ldrun(lambda i: w6(24+i), 12, 82, WF_1)
    only(1, w6c)
    A('s_mul_i32 s42, s3, 12288\ns_add_u32 s42, s42, 4096\nv_add_u32 v6, s42, v1\ns_mul_i32 s42, s3, 3072\ns_add_u32 s42, s42, 4096\ns_lshl_b32 s43, s65, 10\ns_add_u32 s43, s43, s42\nv_add_u32 v7, s43, v1\ns_lshl_b32 s43, s67, 10\ns_add_u32 s43, s43, s42\nv_add_u32 v10, s43, v1')
    A('s_lshr_b32 s54, s3, 1\ns_lshl_b32 s42, s54, 8\nv_add_u32 v9, s42, v5\ns_nop 2')
    for i in range(12): A(f'ds_write_b128 v6, {vr(O+4*i,4)} offset:{1024*i}')
    for a in range(2): A(f'ds_write_b32 v8, v{L+4*a} offset:{2048+256*a}')
    a4()
    A('s_waitcnt lgkmcnt(0)\ns_barrier\ns_cmp_gt_u32 s51, s54\ns_cbranch_scc1 p4_fin')
    for w in range(4): A(f'ds_read_b32 v{12+w}, v9 offset:{2048+512*w}')
    for w in range(4):
        for i in range(3): A(f'ds_read_b128 {vr(F+(w*3+i)*4,4)}, v{7 if i < 2 else 10} offset:{w*12288+(i&1)*1024}')
    A('s_waitcnt lgkmcnt(12)\nv_add_f32 v12, v12, v13\nv_add_f32 v14, v14, v15\nv_add_f32 v12, v12, v14\nv_rcp_f32 v12, v12\ns_nop 0\nv_mov_b32 v13, v12\ns_waitcnt lgkmcnt(0)')
    for i in range(6):
        A(f'v_pk_add_f32 {vr(F+2*i,2)}, {vr(F+2*i,2)}, {vr(F+12+2*i,2)}\nv_pk_add_f32 {vr(F+24+2*i,2)}, {vr(F+24+2*i,2)}, {vr(F+36+2*i,2)}')
    for i in range(6):
        A(f'v_pk_add_f32 {vr(F+2*i,2)}, {vr(F+2*i,2)}, {vr(F+24+2*i,2)}\nv_pk_mul_f32 {vr(F+2*i,2)}, {vr(F+2*i,2)}, v[12:13]\nv_cvt_pk_bf16_f32 v{P+i}, v{F+2*i}, v{F+2*i+1}')
    A(f'buffer_store_dwordx4 {vr(P,4)}, v1, s[20:23], s56 offen sc1')
    half1(P+4, 's57')
    A.label('p4_fin')
    signal('s_add_u32 s42, s46, 4096')
    only(1, w6c, True)
    wait('s_add_u32 s42, s45, 4096', 8, 1)
    A.label('p5_re'); a48(OS, ' sc1')
    g48('p5', 3, lambda i: WK+4*i, lambda i: W25+4*i, 0, X2, ST2, None, lambda: w7(2))
    signal('s_add_u32 s42, s46, 8192')
    only(3, lambda: w7(2), True)
    wait('s_add_u32 s42, s45, 8192', 8, 3)
    def pf7(b, j):
        if b < 2: ld1(w37(b*12+j), 77+b, WF_2, j)
    def epi6(main):
        lnT(TAB6); main(False); stamp()
        c1 = -2*0.7978845608028654*1.4426950408889634
        A(f's_mov_b32 s60, {hx(f2u(c1*0.044715))}\ns_mov_b32 s61, s60\nv_mov_b32 v10, {hx(f2u(c1))}\nv_mov_b32 v11, v10')
        a6()
        def gelu(a):
            r0 = ACC+a*12; t0 = 132
            for i in range(6):
                r = r0+2*i; t = t0+2*i
                A(f'v_pk_mul_f32 {vr(t,2)}, {vr(r,2)}, {vr(r,2)}\nv_pk_fma_f32 {vr(t,2)}, {vr(t,2)}, s[60:61], v[10:11]\nv_pk_mul_f32 {vr(t,2)}, {vr(t,2)}, {vr(r,2)}')
            for i in range(12): A(f'v_exp_f32 v{t0+i}, v{t0+i}')
            for i in range(12): A(f'v_add_f32 v{t0+i}, 1.0, v{t0+i}')
            for i in range(12): A(f'v_rcp_f32 v{t0+i}, v{t0+i}')
            for i in range(6): A(f'v_pk_mul_f32 {vr(r0+2*i,2)}, {vr(r0+2*i,2)}, {vr(t0+2*i,2)}')
        storesT(gelu, 49152)
    g192('p6', X2, ST2, TAB6, w6, pf7, epi6)
    signal('s_add_u32 s42, s46, 12288')
    A('s_lshl_b32 s47, s16, 2')
    wait('s_add_u32 s42, s45, 12288', 8)
    A.label('p7_re')
    for a in range(3): A(f's_add_u32 s{32+a}, s47, {HID + a*49152}')
    for j in range(12):
        for a in range(3): A(f'buffer_load_dwordx4 {vr(WK+(j*3+a)*4,4)}, v1, s[20:23], s{32+a} offen offset:{(j%4)*1024} sc1')
        if j % 4 == 3 and j < 11:
            for a in range(3): A(f's_add_u32 s{32+a}, s{32+a}, 4096')
    g48('p7', 12, lambda i: WK+4*i, w37, 0, 'out', None)
    if STAMPS:
        A('s_waitcnt vmcnt(0)'); stamp()
        A(f's_cmp_lg_u32 s3, {SW}\ns_cbranch_scc1 kb_end\ns_lshl_b32 s42, s2, 7\ns_add_u32 s42, s42, {STAMP+256*128}\ns_mov_b64 exec, 0x7fffffff\nbuffer_store_dword v22, v5, s[20:23], s42 offen')
        print('nstamps', nst[0])
    A.label('kb_end'); A('s_endpgm')
    PB = int(os.environ.get('PADB', '512')); H1 = int(os.environ.get('H1', '1'))
    if PB:
        out = []; n = 0; np_ = 0; on = False
        sz = lambda l: 4 if re.match(r'\s*(s_(waitcnt|nop|barrier|cbranch|branch|sleep|endpgm)|v_(mov|add_f32|mul_f32|exp|rcp|max_f32|sub_f32|lshlrev|and_b32|cmp|add_u32|max_u32))', l) and '0x' not in l else 8
        for l in A.l:
            if l.strip() == ';padon': on = True
            if on and not l.endswith(':') and not l.strip().startswith(';'):
                n += sz(l)
                if n >= PB: out.append(f'pad{np_}:'); out.append(f'    s_cbranch_execz @{np_}'); np_ += 1; n = 4
            out.append(l)
        tgt = lambda k: 'wretA' if 32*(H1-1) <= k < 32*H1 else ('wretB' if k+32 >= np_ else f'pad{k+32}')
        out = [re.sub(r'@(\d+)', lambda m: tgt(int(m.group(1))), l) for l in out]
        fin = []
        for l in out:
            if l.strip() in (';warmA', ';warmB'):
                b = 0 if l.strip()[-1] == 'A' else 32*H1
                fin.append('    s_lshr_b32 s42, s2, 3\n    s_mov_b64 exec, 0')
                for c in range(min(32, np_-b)): fin.append(f'    s_cmp_eq_u32 s42, {c}\n    s_cbranch_scc1 pad{b+c}')
                fin.append(f'wret{l.strip()[-1]}:\n    s_mov_b64 exec, -1')
            else: fin.append(l)
        A.l = fin; print('pads', np_)
    return A.text(), 512, LDSB, 256, 256
```

```python
from common import *
LOG2E = 1.4426950408889634
SC = 96 ** -0.5 * LOG2E
NH = 52
def phase1(A, stamp, wait, nst, LW, poison, EARLY, only):
    SLP = int(os.environ.get('SLP', '24'))
    A(f's_and_b32 s55, s2, 1\ns_lshl_b32 s55, s55, 7\nv_mov_b32 v18, {LW}\nv_mov_b32 v24, 0\nds_write_b32 v18, v24\ns_sub_u32 s36, s2, 192')
    A('s_cmp_ge_u32 s2, 192\ns_cbranch_scc1 p1_helper')
    NS = 5; XR = 24; XU = 48; PB = 24; ACC = 144; XF = 72; RG = 96; QK = 24576
    A.srd(56, 86, 384*2304)
    A('s_and_b32 s36, s2, 7\ns_lshr_b32 s37, s36, 1\ns_and_b32 s36, s36, 1\ns_lshr_b32 s35, s2, 3\ns_lshl_b32 s35, s35, 1\ns_add_u32 s35, s35, s36\ns_lshl_b32 s36, s35, 3')
    A('v_lshrrev_b32 v6, 3, v0\ns_lshl_b32 s42, s3, 3\nv_add_u32 v6, s42, v6')
    A('v_and_b32 v7, 3, v6\nv_mul_u32_u24 v7, 384, v7\nv_lshrrev_b32 v8, 2, v6\nv_add3_u32 v7, v7, v8, s36\nv_mul_u32_u24 v7, 768, v7')
    A('v_and_b32 v8, 7, v0\nv_lshl_add_u32 v7, v8, 4, v7')
    for i in range(6): A(f'buffer_load_dwordx4 {vr(XR+4*i,4)}, v7, s[24:27], 0 offen offset:{128*i}')
    A('v_mul_u32_u24 v10, 18432, v2\nv_mul_u32_u24 v11, 12, v3\nv_add_u32 v10, v10, v11\nv_add_u32 v11, 4608, v10\nv_add_u32 v12, 9216, v10\nv_add_u32 v13, 13824, v10')
    A('s_mul_i32 s47, s37, 192\ns_mul_i32 s48, s3, 768\ns_add_u32 s47, s47, s48\ns_lshr_b32 s33, s2, 3\ns_cmp_ge_u32 s33, 12\ns_cselect_b32 s34, 12, 0\ns_sub_u32 s33, s33, s34\ns_lshl_b32 s34, s33, 10\ns_mul_i32 s33, s33, 73728\ns_mov_b32 s60, 0x05040100\ns_mov_b32 s61, 0x07060302')
    def wld(j, e):
        if e == 0: A('s_add_u32 s48, s47, s33\ns_add_u32 s33, s33, 73728\ns_cmp_eq_u32 s33, 884736\ns_cselect_b32 s33, 0, s33')
        A(f'buffer_load_dwordx3 {vr(RG+(j%NS)*32+4*e,3)}, v{10+e//2}, s[56:59], s48 offen offset:{(e&1)*2304}')
    A('v_lshrrev_b32 v7, 4, v6\nv_mul_u32_u24 v7, 12288, v7\nv_lshrrev_b32 v14, 2, v8\nv_lshl_add_u32 v7, v14, 10, v7')
    A('v_and_b32 v14, 3, v8\nv_lshl_add_u32 v7, v14, 8, v7\nv_and_b32 v14, 15, v6\nv_lshl_add_u32 v7, v14, 4, v7')
    def red8(x):
        return [f's_nop 1\nv_add_f32_dpp v{x}, v{x}, v{x} {m} row_mask:0xf bank_mask:0xf' for m in ('quad_perm:[1,0,3,2]', 'quad_perm:[2,3,0,1]', 'row_half_mirror')]
    ln = []
    for i in range(24): ln.append(f'v_lshlrev_b32 v{XU+2*i}, 16, v{XR+i}\nv_and_b32 v{XU+1+2*i}, 0xffff0000, v{XR+i}')
    ln.append(f'v_pk_add_f32 v[14:15], {vr(XU,2)}, {vr(XU+2,2)}\nv_pk_add_f32 v[16:17], {vr(XU+4,2)}, {vr(XU+6,2)}')
    for i in range(4, 24): ln.append(f'v_pk_add_f32 {vr(14+2*(i&1),2)}, {vr(14+2*(i&1),2)}, {vr(XU+2*i,2)}')
    ln.append('v_pk_add_f32 v[14:15], v[14:15], v[16:17]\nv_add_f32 v14, v14, v15'); ln += red8(14)
    ln.append(f'v_mul_f32 v14, {hx(f2u(-1.0/384))}, v14\nv_mov_b32 v15, v14')
    for i in range(24): ln.append(f'v_pk_add_f32 {vr(XU+2*i,2)}, {vr(XU+2*i,2)}, v[14:15]')
    ln.append(f'v_pk_mul_f32 v[14:15], {vr(XU,2)}, {vr(XU,2)}\nv_pk_mul_f32 v[16:17], {vr(XU+2,2)}, {vr(XU+2,2)}')
    for i in range(2, 24): ln.append(f'v_pk_fma_f32 {vr(14+2*(i&1),2)}, {vr(XU+2*i,2)}, {vr(XU+2*i,2)}, {vr(14+2*(i&1),2)}')
    ln.append('v_pk_add_f32 v[14:15], v[14:15], v[16:17]\nv_add_f32 v14, v14, v15'); ln += red8(14)
    ln.append(f'v_mov_b32 v15, {hx(f2u(1e-5))}\nv_fmac_f32 v15, {hx(f2u(1.0/384))}, v14\nv_rsq_f32 v14, v15\ns_nop 0\nv_mov_b32 v15, v14')
    for i in range(24):
        ln.append(f'v_pk_mul_f32 {vr(XU+2*i,2)}, {vr(XU+2*i,2)}, v[14:15]\nv_cvt_pk_bf16_f32 v{XR+i}, v{XU+2*i}, v{XU+1+2*i}')
        if i % 4 == 3: ln.append(f'ds_write_b128 v7, {vr(XR+i-3,4)} offset:{2048*(i//4)}')
    N0 = int(os.environ.get('N0', '3'))
    A(f'v_bfe_u32 v20, v0, 2, 2\ns_mov_b32 s49, {hx(f2u(SC))}')
    A('v_and_b32 v21, 3, v0\nv_mul_u32_u24 v21, 0x48000, v21\nv_lshl_add_u32 v21, v2, 8, v21\nv_lshl_add_u32 v21, v20, 4, v21')
    A(f's_lshr_b32 s50, s36, 4\ns_mul_i32 s50, s50, 12\ns_mul_i32 s51, s37, 3\ns_add_u32 s50, s50, s51\ns_lshl_b32 s50, s50, 10')
    A(f's_and_b32 s51, s36, 15\ns_lshl_b32 s51, s51, 4\ns_add_u32 s50, s50, s51\ns_add_u32 s50, s50, {OT}')
    A(f's_mul_i32 s51, s35, 43\ns_lshr_b32 s51, s51, 8\ns_mul_i32 s52, s51, 6\ns_sub_u32 s52, s35, s52\ns_lshl_b32 s52, s52, 2\ns_add_u32 s52, s52, s37\n{wmap(52, 53)}\ns_lshl_b32 s51, s51, 9\ns_add_u32 s51, s51, s52\ns_add_u32 s51, s51, {FO}')
    A('s_cmp_eq_u32 s3, 3\ns_cbranch_scc1 p1_w3\n;padon')
    for j in range(N0):
        for e in range(8): wld(j, e)
    A(f's_waitcnt vmcnt({8*N0})')
    stamp()
    rest = [(j, e) for j in range(N0, NS) for e in range(8)]
    step = max(1, len(ln) // (len(rest) + 1)) if rest else 0
    for i, t in enumerate(ln):
        A(t)
        if rest and i % step == step-1: wld(*rest.pop(0))
    assert not rest
    A('s_waitcnt lgkmcnt(0)\ns_barrier')
    stamp()
    def xrd(j):
        A('v_add_u32 v6, s34, v1\ns_add_u32 s34, s34, 1024\ns_cmp_eq_u32 s34, 12288\ns_cselect_b32 s34, 0, s34')
        for tb in range(2): A(f'ds_read_b128 {vr(XF+(j&1)*8+4*tb,4)}, v6 offset:{tb*12288}')
    def perm(j, c):
        for p in range(4):
            b = RG+(j%NS)*32
            A(f'v_perm_b32 v{PB+(j&1)*24+4*c+p}, v{b+4*(2*p+1)+c//2}, v{b+4*(2*p)+c//2}, s{60+(c&1)}')
    def main(swap, ex=0):
        xrd(0)
        A(f's_waitcnt vmcnt({8*(NS-1)+ex})')
        for c in range(6): perm(0, c)
        for j in range(12):
            if j < 11: xrd(j+1)
            if j+NS < 12:
                for e in range(8): wld(j+NS, e)
            if j < 11: A(f's_waitcnt vmcnt({8*(min(11, j+NS)-(j+1))+(ex if j+1 < NS else 0)}) lgkmcnt(2)')
            else: A('s_waitcnt lgkmcnt(0)')
            for c in range(6):
                for tb in range(2):
                    d = ar(ACC+(tb*6+c)*4); w = PB+(j&1)*24+4*c; x = XF+(j&1)*8+4*tb; cc = '0' if j == 0 else None
                    A(mfma32(d, x, w, cc) if swap else mfma32(d, w, x, cc))
                if j < 11: perm(j+1, c)
        A('s_nop 7')
        for i in range(48): A(f'v_accvgpr_read_b32 v{RG+i}, a{ACC+i}')
        for i in range(24): A(f'v_cvt_pk_bf16_f32 v{PB+i}, v{RG+2*i}, v{RG+2*i+1}')
    A('s_cmp_eq_u32 s3, 2\ns_cbranch_scc1 p1_v')
    main(False)
    A(f's_mul_i32 s42, s3, 6144\ns_add_u32 s42, s42, {QK}\nv_add_u32 v6, s42, v1')
    for i in range(6): A(f'ds_write_b128 v6, {vr(PB+4*i,4)} offset:{1024*i}')
    A('s_waitcnt lgkmcnt(0)\ns_barrier\ns_branch p1_spin')
    A.label('p1_v')
    main(True)
    stamp()
    A('v_cmp_eq_u32 vcc, v20, v2')
    A('s_barrier')
    F = 72; S = 120; O = 136
    for i in range(6):
        for m in range(2): A(f'ds_read_b128 {vr(F+(i*2+m)*4,4)}, v1 offset:{QK+m*6144+1024*i}')
    for tb in range(2):
        A(f's_waitcnt lgkmcnt({6*(1-tb)})')
        for j in range(3): A(mfma32(S+8*tb, F+((tb*3+j)*2+1)*4, F+((tb*3+j)*2)*4, '0' if j == 0 else None))
    A('s_nop 4')
    for tb in range(2):
        b = S+8*tb
        A(f'v_max3_f32 v{b+4}, v{b}, v{b+1}, v{b+2}\nv_max_f32 v{b+4}, v{b+4}, v{b+3}')
        for i in range(4): A(f'v_sub_f32 v{b+i}, v{b+i}, v{b+4}\nv_mul_f32 v{b+i}, s49, v{b+i}\nv_exp_f32 v{b+i}, v{b+i}')
        A(f's_nop 0\nv_add_f32 v{b+4}, v{b}, v{b+1}\nv_add_f32 v{b+5}, v{b+2}, v{b+3}\nv_add_f32 v{b+4}, v{b+4}, v{b+5}\nv_rcp_f32 v{b+4}, v{b+4}\ns_nop 0')
        A(f'v_cndmask_b32 v{b+4}, 0, v{b+4}, vcc')
        for i in range(4): A(f'v_mul_f32 v{b+i}, v{b+i}, v{b+4}')
        A(f'v_cvt_pk_bf16_f32 v{b+6}, v{b}, v{b+1}\nv_cvt_pk_bf16_f32 v{b+7}, v{b+2}, v{b+3}\ns_nop 1')
        for c in range(6): A(f'v_mfma_f32_16x16x16_bf16 {vr(O+(tb*6+c)*4,4)}, {vr(PB+tb*12+2*c,2)}, {vr(b+6,2)}, 0')
    A('s_nop 2')
    for tb in range(2):
        for j in range(3):
            for i in range(4): A(f'v_cvt_pk_bf16_f32 v{F+(tb*3+j)*4+i}, v{O+(tb*3+j)*8+2*i}, v{O+(tb*3+j)*8+2*i+1}')
            A(f'buffer_store_dwordx4 {vr(F+(tb*3+j)*4,4)}, v21, s[20:23], s50 offen offset:{64*tb+1024*j} sc1')
    A('v_mov_b32 v6, 1\nv_lshlrev_b32 v7, 12, v0\n' + 's_waitcnt vmcnt(0)\n' + 's_mov_b64 exec, 15\nbuffer_store_dword v6, v7, s[20:23], s51 offen sc1\ns_mov_b64 exec, -1')
    stamp()
    A.label('p1_spin')
    A('s_mov_b32 s43, 0x400000')
    A.label('p1_spl')
    A('ds_read_b32 v6, v18\ns_sub_u32 s43, s43, 1\ns_cbranch_scc1 p2_pre\ns_waitcnt lgkmcnt(0)\nv_cmp_ne_u32 vcc, 1, v6\ns_cbranch_vccz p2_pre\ns_sleep 1\ns_branch p1_spl')
    A.label('p1_w3')
    if int(os.environ.get('TLB', '0')):
        A(f'v_lshlrev_b32 v100, 18, v0\nv_mul_u32_u24 v101, 18432, v0\nbuffer_load_dword v102, v101, s[28:31], 0 offen sc1\nv_cmp_gt_u32 vcc, 16, v0\nv_cndmask_b32 v100, v100, 0, vcc\nv_mov_b32 v101, {DUM2}\nv_cmp_eq_u32 vcc, 1, v0\nv_cndmask_b32 v100, v100, v101, vcc\nbuffer_load_dword v103, v100, s[20:23], 0 offen sc1')
    A(';warmA\ns_cmp_ge_u32 s2, 192\ns_cbranch_scc1 p1_h3')
    A('s_waitcnt vmcnt(0)')
    for t in ln: A(t)
    A('s_waitcnt lgkmcnt(0)\ns_barrier')
    n0 = nst[0]
    A.label('p1_h3')
    A(';warmB')
    wait('s_mov_b32 s42, s55', 1, 3, 8, SLP, False)
    A(f's_waitcnt lgkmcnt(0)\ns_barrier\ns_cmp_lt_u32 s2, 192\ns_cbranch_scc1 p1_pp\ns_cmp_ge_u32 s36, {NH}\ns_cbranch_scc1 p1_pp')
    A(f's_lshl_b32 s42, s36, 2\ns_add_u32 s42, s42, {HL}\nv_mov_b32 v6, 1\nv_lshlrev_b32 v7, 8, v0\ns_mov_b32 exec_hi, 0\nbuffer_store_dword v6, v7, s[20:23], s42 offen sc1\ns_mov_b64 exec, -1')
    A.label('p1_pp'); poison('x1')
    A.label('p1_poll')
    wait(f's_lshl_b32 s42, s12, 8\ns_add_u32 s42, s42, {HL}', 4, 3, 20, 2, False)
    A('v_mov_b32 v6, 1\nds_write_b32 v18, v6\ns_branch p2_pre')
    A.label('p1_helper')
    A('s_cmp_lg_u32 s2, 255\ns_cbranch_scc1 p1_nz\nv_mov_b32 v25, 0\nv_mov_b32 v26, 0\nv_mov_b32 v27, 0\ns_mul_i32 s47, s3, 18432')
    for q in range(18): A(f's_add_u32 s42, s47, {FL+q*1024}\nbuffer_store_dwordx4 v[24:27], v1, s[20:23], s42 offen sc1')
    A('s_waitcnt vmcnt(0)\ns_barrier\ns_cmp_lg_u32 s3, 2\ns_cbranch_scc1 p1_nz\nv_mov_b32 v6, 1\nv_lshlrev_b32 v7, 7, v0\ns_mov_b64 exec, 3\nbuffer_store_dword v6, v7, s[8:11], 0 offen sc1\ns_mov_b64 exec, -1')
    A.label('p1_nz')
    A(f's_cmp_eq_u32 s3, 3\ns_cbranch_scc1 p1_w3\ns_cmp_ge_u32 s2, {192+NH}\ns_cbranch_scc1 p1_hdone')
    A.label('p1_hw')
    A('v_bfe_u32 v10, v0, 2, 2\nv_and_b32 v11, 1, v2\nv_lshlrev_b32 v11, 1, v11\nv_and_b32 v8, 3, v0\nv_xor_b32 v11, v11, v8\nv_lshlrev_b32 v11, 4, v11')
    A('v_lshrrev_b32 v6, 2, v0\nv_lshlrev_b32 v6, 6, v6\nv_and_b32 v7, 1, v2\nv_lshl_add_u32 v6, v7, 5, v6\nv_lshl_add_u32 v6, v8, 3, v6\nv_xor_b32 v7, 32, v6')
    A('s_mul_i32 s36, s36, 3\ns_add_u32 s36, s36, s3')
    cases = [(0, 12, 88, 768, 384, WF_PT, 12, 0), (12, 48, 90, 2304, 384, WF_QS, 12, CS_QS), (48, 96, 94, 3072, 384, WF_1, 12, CS_1),
             (96, 108, 92, 768, 384, WF_PS, 12, 0)] + [(108+12*q, 120+12*q, 96, 768, 1536, WF_2 + q*12*KB, 48, 0) for q in range(4)]
    for ci, (lo, hi, p, ld, rows, dst, ks, cs) in enumerate(cases):
        if ci < len(cases)-1: A(f's_cmp_ge_u32 s36, {hi}\ns_cbranch_scc1 p1_c{ci+1}')
        A.srd(56, p, ld*rows)
        k0 = (ci-4)*384 if ci >= 4 else 0
        A(f's_mov_b32 s37, {ld}\ns_sub_u32 s47, s36, {lo}\ns_mov_b32 s48, {k0*ld}\ns_mov_b32 s49, {dst}\ns_mov_b32 s50, {ks*KB}\ns_mov_b32 s51, {cs}')
        if ci < len(cases)-1:
            A('s_branch p1_hgo'); A.label(f'p1_c{ci+1}')
    A.label('p1_hgo')
    A('v_lshrrev_b32 v12, 2, v0\nv_mul_lo_u32 v12, v12, s37\nv_lshl_add_u32 v13, v2, 3, v10\nv_mul_lo_u32 v13, v13, s37')
    A('s_lshl_b32 s43, s47, 6\ns_add_u32 s48, s48, s43\ns_lshl_b32 s32, s37, 4\ns_lshl_b32 s33, s37, 2\ns_lshl_b32 s34, s37, 5\ns_mov_b32 s35, s34\ns_mul_i32 s52, s3, 24576\nv_add_u32 v14, s52, v1')
    A(f's_cmp_lg_u32 s49, {WF_PT}\ns_cbranch_scc1 p1_hnat\nv_mul_u32_u24 v12, 6, v12\nv_mov_b32 v13, v12\ns_mov_b32 s32, 768\ns_mov_b32 s33, 768\ns_mov_b32 s34, 1536\ns_mov_b32 s35, {92*768}')
    A.label('p1_hnat')
    A('v_add_u32 v12, v12, v11\nv_add_u32 v13, v13, v11')
    for j in range(12):
        v = 13 if j % 3 == 1 else 12
        A(f's_add_u32 s43, s48, s{33 if j % 3 == 1 else 32}\nbuffer_load_dwordx4 {vr(132+8*j,4)}, v{v}, s[56:59], s48 offen\ns_add_u32 s48, s48, s{35 if j % 3 == 2 else 34}')
        A(f'buffer_load_dwordx4 {vr(136+8*j,4)}, v{v}, s[56:59], s43 offen')
    A('v_add_u32 v6, s52, v6\nv_add_u32 v7, s52, v7')
    A('s_lshl_b32 s53, s47, 1\ns_mul_i32 s53, s53, s50\ns_add_u32 s53, s53, s49\ns_add_u32 s54, s53, s50')
    for i in range(4): A(f'v_mov_b32 v{128+i}, 0x3f803f80')
    nst[0] = 1; stamp()
    for q in range(4):
        for i in range(6): A(f's_waitcnt vmcnt({23-i})\nds_write_b128 v14, {vr(132+4*(6*q+i),4)} offset:{1024*(6*q+i)}')
        A('s_waitcnt lgkmcnt(0)')
        for j in range(3*q, 3*q+3):
            for c in range(2):
                for hh in range(2): A(f'ds_read_b64_tr_b16 {vr(24+(j*2+c)*4+hh*2,2)}, v{6+c} offset:{j*2048+hh*1024}')
        A('s_waitcnt lgkmcnt(0)')
        for j in range(3*q, 3*q+3):
            for c in range(2):
                A(f'buffer_store_dwordx4 {vr(24+(j*2+c)*4,4)}, v1, s[20:23], s{53+c} offen offset:{(j%4)*1024} sc1')
                A(mfma32(120+4*c, 24+(j*2+c)*4, 128, '0' if j == 0 else None))
            if j % 4 == 3: A('s_add_u32 s53, s53, 4096\ns_add_u32 s54, s54, 4096')
    stamp()
    A('s_cmp_eq_u32 s51, 0\ns_cbranch_scc1 p1_hdone')
    A('s_lshl_b32 s43, s47, 7\ns_add_u32 s51, s51, s43\nv_lshlrev_b32 v10, 4, v2\nv_cmp_eq_u32 vcc, 0, v3\ns_nop 7\ns_mov_b64 exec, vcc')
    for c in range(2): A(f'buffer_store_dwordx4 {vr(120+4*c,4)}, v10, s[20:23], s51 offen offset:{64*c} sc1')
    A('s_mov_b64 exec, -1')
    A.label('p1_hdone')
    A('s_waitcnt vmcnt(0) lgkmcnt(0)\ns_barrier')
    stamp()
    A('s_branch p1_spin')
    nst[0] = n0
```

```python
from common import *
LOG2E = 1.4426950408889634
SC = 96 ** -0.5 * LOG2E
NH = 60
def phase1(A, stamp, wait, nst, LW, poison, EARLY, only):
    SLP = int(os.environ.get('SLP', '24'))
    A(f's_and_b32 s55, s2, 1\ns_lshl_b32 s55, s55, 7\nv_mov_b32 v18, {LW}\nv_mov_b32 v24, 0\nds_write_b32 v18, v24\ns_sub_u32 s36, s2, 192')
    A('s_cmp_ge_u32 s2, 192\ns_cbranch_scc1 p1_helper')
    NS = 5; XR = 24; XU = 48; PB = 24; ACC = 144; XF = 72; RG = 96; QK = 24576
    A.srd(56, 86, 384*2304)
    A('s_and_b32 s36, s2, 7\ns_lshr_b32 s37, s36, 1\ns_and_b32 s36, s36, 1\ns_lshr_b32 s35, s2, 3\ns_lshl_b32 s35, s35, 1\ns_add_u32 s35, s35, s36\ns_lshl_b32 s36, s35, 3')
    A('v_lshrrev_b32 v6, 3, v0\ns_lshl_b32 s42, s3, 3\nv_add_u32 v6, s42, v6')
    A('v_and_b32 v7, 3, v6\nv_mul_u32_u24 v7, 384, v7\nv_lshrrev_b32 v8, 2, v6\nv_add3_u32 v7, v7, v8, s36\nv_mul_u32_u24 v7, 768, v7')
    A('v_and_b32 v8, 7, v0\nv_lshl_add_u32 v7, v8, 4, v7')
    for i in range(6): A(f'buffer_load_dwordx4 {vr(XR+4*i,4)}, v7, s[24:27], 0 offen offset:{128*i}')
    A('v_mul_u32_u24 v10, 18432, v2\nv_mul_u32_u24 v11, 12, v3\nv_add_u32 v10, v10, v11\nv_add_u32 v11, 4608, v10\nv_add_u32 v12, 9216, v10\nv_add_u32 v13, 13824, v10')
    A('s_mul_i32 s47, s37, 192\ns_mul_i32 s48, s3, 768\ns_add_u32 s47, s47, s48\ns_lshr_b32 s33, s2, 3\ns_cmp_ge_u32 s33, 12\ns_cselect_b32 s34, 12, 0\ns_sub_u32 s33, s33, s34\ns_lshl_b32 s34, s33, 10\ns_mul_i32 s33, s33, 73728\ns_mov_b32 s60, 0x05040100\ns_mov_b32 s61, 0x07060302')
    def wld(j, e):
        if e == 0: A('s_add_u32 s48, s47, s33\ns_add_u32 s33, s33, 73728\ns_cmp_eq_u32 s33, 884736\ns_cselect_b32 s33, 0, s33')
        A(f'buffer_load_dwordx3 {vr(RG+(j%NS)*32+4*e,3)}, v{10+e//2}, s[56:59], s48 offen offset:{(e&1)*2304}')
    A('v_lshrrev_b32 v7, 4, v6\nv_mul_u32_u24 v7, 12288, v7\nv_lshrrev_b32 v14, 2, v8\nv_lshl_add_u32 v7, v14, 10, v7')
    A('v_and_b32 v14, 3, v8\nv_lshl_add_u32 v7, v14, 8, v7\nv_and_b32 v14, 15, v6\nv_lshl_add_u32 v7, v14, 4, v7')
    def red8(x):
        return [f's_nop 1\nv_add_f32_dpp v{x}, v{x}, v{x} {m} row_mask:0xf bank_mask:0xf' for m in ('quad_perm:[1,0,3,2]', 'quad_perm:[2,3,0,1]', 'row_half_mirror')]
    ln = []
    for i in range(24): ln.append(f'v_lshlrev_b32 v{XU+2*i}, 16, v{XR+i}\nv_and_b32 v{XU+1+2*i}, 0xffff0000, v{XR+i}')
    ln.append(f'v_pk_add_f32 v[14:15], {vr(XU,2)}, {vr(XU+2,2)}\nv_pk_add_f32 v[16:17], {vr(XU+4,2)}, {vr(XU+6,2)}')
    for i in range(4, 24): ln.append(f'v_pk_add_f32 {vr(14+2*(i&1),2)}, {vr(14+2*(i&1),2)}, {vr(XU+2*i,2)}')
    ln.append('v_pk_add_f32 v[14:15], v[14:15], v[16:17]\nv_add_f32 v14, v14, v15'); ln += red8(14)
    ln.append(f'v_mul_f32 v14, {hx(f2u(-1.0/384))}, v14\nv_mov_b32 v15, v14')
    for i in range(24): ln.append(f'v_pk_add_f32 {vr(XU+2*i,2)}, {vr(XU+2*i,2)}, v[14:15]')
    ln.append(f'v_pk_mul_f32 v[14:15], {vr(XU,2)}, {vr(XU,2)}\nv_pk_mul_f32 v[16:17], {vr(XU+2,2)}, {vr(XU+2,2)}')
    for i in range(2, 24): ln.append(f'v_pk_fma_f32 {vr(14+2*(i&1),2)}, {vr(XU+2*i,2)}, {vr(XU+2*i,2)}, {vr(14+2*(i&1),2)}')
    ln.append('v_pk_add_f32 v[14:15], v[14:15], v[16:17]\nv_add_f32 v14, v14, v15'); ln += red8(14)
    ln.append(f'v_mov_b32 v15, {hx(f2u(1e-5))}\nv_fmac_f32 v15, {hx(f2u(1.0/384))}, v14\nv_rsq_f32 v14, v15\ns_nop 0\nv_mov_b32 v15, v14')
    for i in range(24):
        ln.append(f'v_pk_mul_f32 {vr(XU+2*i,2)}, {vr(XU+2*i,2)}, v[14:15]\nv_cvt_pk_bf16_f32 v{XR+i}, v{XU+2*i}, v{XU+1+2*i}')
        if i % 4 == 3: ln.append(f'ds_write_b128 v7, {vr(XR+i-3,4)} offset:{2048*(i//4)}')
    N0 = int(os.environ.get('N0', '3'))
    A(f'v_bfe_u32 v20, v0, 2, 2\ns_mov_b32 s49, {hx(f2u(SC))}')
    A('v_and_b32 v21, 3, v0\nv_mul_u32_u24 v21, 0x48000, v21\nv_lshl_add_u32 v21, v2, 8, v21\nv_lshl_add_u32 v21, v20, 4, v21')
    A(f's_lshr_b32 s50, s36, 4\ns_mul_i32 s50, s50, 12\ns_mul_i32 s51, s37, 3\ns_add_u32 s50, s50, s51\ns_lshl_b32 s50, s50, 10')
    A(f's_and_b32 s51, s36, 15\ns_lshl_b32 s51, s51, 4\ns_add_u32 s50, s50, s51\ns_add_u32 s50, s50, {OT}')
    A(f's_mul_i32 s51, s35, 43\ns_lshr_b32 s51, s51, 8\ns_mul_i32 s52, s51, 6\ns_sub_u32 s52, s35, s52\ns_lshl_b32 s52, s52, 2\ns_add_u32 s52, s52, s37\n{wmap(52, 53)}\ns_lshl_b32 s51, s51, 9\ns_add_u32 s51, s51, s52\ns_add_u32 s51, s51, {FO}')
    A('s_cmp_eq_u32 s3, 3\ns_cbranch_scc1 p1_w3\n;padon')
    for j in range(N0):
        for e in range(8): wld(j, e)
    A(f's_waitcnt vmcnt({8*N0})')
    stamp()
    rest = [(j, e) for j in range(N0, NS) for e in range(8)]
    step = max(1, len(ln) // (len(rest) + 1)) if rest else 0
    for i, t in enumerate(ln):
        A(t)
        if rest and i % step == step-1: wld(*rest.pop(0))
    assert not rest
    A('s_waitcnt lgkmcnt(0)\ns_barrier')
    stamp()
    def xrd(j):
        A('v_add_u32 v6, s34, v1\ns_add_u32 s34, s34, 1024\ns_cmp_eq_u32 s34, 12288\ns_cselect_b32 s34, 0, s34')
        for tb in range(2): A(f'ds_read_b128 {vr(XF+(j&1)*8+4*tb,4)}, v6 offset:{tb*12288}')
    def perm(j, c):
        for p in range(4):
            b = RG+(j%NS)*32
            A(f'v_perm_b32 v{PB+(j&1)*24+4*c+p}, v{b+4*(2*p+1)+c//2}, v{b+4*(2*p)+c//2}, s{60+(c&1)}')
    def main(swap, ex=0):
        xrd(0)
        A(f's_waitcnt vmcnt({8*(NS-1)+ex})')
        for c in range(6): perm(0, c)
        for j in range(12):
            if j < 11: xrd(j+1)
            if j+NS < 12:
                for e in range(8): wld(j+NS, e)
            if j < 11: A(f's_waitcnt vmcnt({8*(min(11, j+NS)-(j+1))+(ex if j+1 < NS else 0)}) lgkmcnt(2)')
            else: A('s_waitcnt lgkmcnt(0)')
            for c in range(6):
                for tb in range(2):
                    d = ar(ACC+(tb*6+c)*4); w = PB+(j&1)*24+4*c; x = XF+(j&1)*8+4*tb; cc = '0' if j == 0 else None
                    A(mfma32(d, x, w, cc) if swap else mfma32(d, w, x, cc))
                if j < 11: perm(j+1, c)
        A('s_nop 7')
        for i in range(48): A(f'v_accvgpr_read_b32 v{RG+i}, a{ACC+i}')
        for i in range(24): A(f'v_cvt_pk_bf16_f32 v{PB+i}, v{RG+2*i}, v{RG+2*i+1}')
    A('s_cmp_eq_u32 s3, 2\ns_cbranch_scc1 p1_v')
    main(False)
    A(f's_mul_i32 s42, s3, 6144\ns_add_u32 s42, s42, {QK}\nv_add_u32 v6, s42, v1')
    for i in range(6): A(f'ds_write_b128 v6, {vr(PB+4*i,4)} offset:{1024*i}')
    A('s_waitcnt lgkmcnt(0)\ns_barrier\ns_branch p1_spin')
    A.label('p1_v')
    main(True)
    stamp()
    A('v_cmp_eq_u32 vcc, v20, v2')
    A('s_barrier')
    F = 72; S = 120; O = 136
    for i in range(6):
        for m in range(2): A(f'ds_read_b128 {vr(F+(i*2+m)*4,4)}, v1 offset:{QK+m*6144+1024*i}')
    for tb in range(2):
        A(f's_waitcnt lgkmcnt({6*(1-tb)})')
        for j in range(3): A(mfma32(S+8*tb, F+((tb*3+j)*2+1)*4, F+((tb*3+j)*2)*4, '0' if j == 0 else None))
    A('s_nop 4')
    for tb in range(2):
        b = S+8*tb
        A(f'v_max3_f32 v{b+4}, v{b}, v{b+1}, v{b+2}\nv_max_f32 v{b+4}, v{b+4}, v{b+3}')
        for i in range(4): A(f'v_sub_f32 v{b+i}, v{b+i}, v{b+4}\nv_mul_f32 v{b+i}, s49, v{b+i}\nv_exp_f32 v{b+i}, v{b+i}')
        A(f's_nop 0\nv_add_f32 v{b+4}, v{b}, v{b+1}\nv_add_f32 v{b+5}, v{b+2}, v{b+3}\nv_add_f32 v{b+4}, v{b+4}, v{b+5}\nv_rcp_f32 v{b+4}, v{b+4}\ns_nop 0')
        A(f'v_cndmask_b32 v{b+4}, 0, v{b+4}, vcc')
        for i in range(4): A(f'v_mul_f32 v{b+i}, v{b+i}, v{b+4}')
        A(f'v_cvt_pk_bf16_f32 v{b+6}, v{b}, v{b+1}\nv_cvt_pk_bf16_f32 v{b+7}, v{b+2}, v{b+3}\ns_nop 1')
        for c in range(6): A(f'v_mfma_f32_16x16x16_bf16 {vr(O+(tb*6+c)*4,4)}, {vr(PB+tb*12+2*c,2)}, {vr(b+6,2)}, 0')
    A('s_nop 2')
    for tb in range(2):
        for j in range(3):
            for i in range(4): A(f'v_cvt_pk_bf16_f32 v{F+(tb*3+j)*4+i}, v{O+(tb*3+j)*8+2*i}, v{O+(tb*3+j)*8+2*i+1}')
            A(f'buffer_store_dwordx4 {vr(F+(tb*3+j)*4,4)}, v21, s[20:23], s50 offen offset:{64*tb+1024*j} sc1')
    A('v_mov_b32 v6, 1\nv_lshlrev_b32 v7, 12, v0\n' + 's_waitcnt vmcnt(0)\n' + 's_mov_b64 exec, 15\nbuffer_store_dword v6, v7, s[20:23], s51 offen sc1\ns_mov_b64 exec, -1')
    stamp()
    A.label('p1_spin')
    A('s_mov_b32 s43, 0x400000')
    A.label('p1_spl')
    A('ds_read_b32 v6, v18\ns_sub_u32 s43, s43, 1\ns_cbranch_scc1 p2_pre\ns_waitcnt lgkmcnt(0)\nv_cmp_ne_u32 vcc, 1, v6\ns_cbranch_vccz p2_pre\ns_sleep 1\ns_branch p1_spl')
    A.label('p1_w3')
    if int(os.environ.get('TLB', '0')):
        A(f'v_lshlrev_b32 v100, 18, v0\nv_mul_u32_u24 v101, 18432, v0\nbuffer_load_dword v102, v101, s[28:31], 0 offen sc1\nv_cmp_gt_u32 vcc, 16, v0\nv_cndmask_b32 v100, v100, 0, vcc\nv_mov_b32 v101, {DUM2}\nv_cmp_eq_u32 vcc, 1, v0\nv_cndmask_b32 v100, v100, v101, vcc\nbuffer_load_dword v103, v100, s[20:23], 0 offen sc1')
    A(';warmA\ns_cmp_ge_u32 s2, 192\ns_cbranch_scc1 p1_h3')
    A('s_waitcnt vmcnt(0)')
    for t in ln: A(t)
    A('s_waitcnt lgkmcnt(0)\ns_barrier')
    n0 = nst[0]
    A.label('p1_h3')
    A(';warmB')
    wait('s_mov_b32 s42, s55', 1, 3, 8, SLP, False)
    A(f's_waitcnt lgkmcnt(0)\ns_barrier\ns_cmp_lt_u32 s2, 192\ns_cbranch_scc1 p1_pp\ns_cmp_ge_u32 s36, {NH}\ns_cbranch_scc1 p1_pp')
    A(f's_lshl_b32 s42, s36, 2\ns_add_u32 s42, s42, {HL}\nv_mov_b32 v6, 1\nv_lshlrev_b32 v7, 8, v0\ns_mov_b32 exec_hi, 0\nbuffer_store_dword v6, v7, s[20:23], s42 offen sc1\ns_mov_b64 exec, -1')
    A.label('p1_pp'); poison('x1')
    A.label('p1_poll')
    wait(f's_lshl_b32 s42, s12, 8\ns_add_u32 s42, s42, {HL}', 6, 3, 20, 2, False)
    A('v_mov_b32 v6, 1\nds_write_b32 v18, v6\ns_branch p2_pre')
    A.label('p1_helper')
    A('s_cmp_lg_u32 s2, 255\ns_cbranch_scc1 p1_nz\nv_mov_b32 v25, 0\nv_mov_b32 v26, 0\nv_mov_b32 v27, 0\ns_mul_i32 s47, s3, 18432')
    for q in range(18): A(f's_add_u32 s42, s47, {FL+q*1024}\nbuffer_store_dwordx4 v[24:27], v1, s[20:23], s42 offen sc1')
    A('s_waitcnt vmcnt(0)\ns_barrier\ns_cmp_lg_u32 s3, 2\ns_cbranch_scc1 p1_nz\nv_mov_b32 v6, 1\nv_lshlrev_b32 v7, 7, v0\ns_mov_b64 exec, 3\nbuffer_store_dword v6, v7, s[8:11], 0 offen sc1\ns_mov_b64 exec, -1')
    A.label('p1_nz')
    A(f's_cmp_eq_u32 s3, 3\ns_cbranch_scc1 p1_w3\ns_cmp_ge_u32 s2, {192+NH}\ns_cbranch_scc1 p1_hdone')
    A.label('p1_hw')
    A('v_bfe_u32 v10, v0, 2, 2\nv_and_b32 v11, 1, v2\nv_lshlrev_b32 v11, 1, v11\nv_and_b32 v8, 3, v0\nv_xor_b32 v11, v11, v8\nv_lshlrev_b32 v11, 4, v11')
    A('v_lshrrev_b32 v6, 2, v0\nv_lshlrev_b32 v6, 6, v6\nv_and_b32 v7, 1, v2\nv_lshl_add_u32 v6, v7, 5, v6\nv_lshl_add_u32 v6, v8, 3, v6\nv_xor_b32 v7, 32, v6')
    A('s_cmp_ge_u32 s36, 24\ns_cbranch_scc1 p1_s3\ns_cmp_eq_u32 s3, 2\ns_cbranch_scc1 p1_hdone\ns_lshl_b32 s36, s36, 1\ns_branch p1_s2')
    A.label('p1_s3'); A('s_mul_i32 s36, s36, 3\ns_sub_u32 s36, s36, 24')
    A.label('p1_s2'); A('s_add_u32 s36, s36, s3')
    cases = [(0, 12, 88, 768, 384, WF_PT, 12, 0), (12, 48, 90, 2304, 384, WF_QS, 12, CS_QS), (48, 96, 94, 3072, 384, WF_1, 12, CS_1),
             (96, 108, 92, 768, 384, WF_PS, 12, 0)] + [(108+12*q, 120+12*q, 96, 768, 1536, WF_2 + q*12*KB, 48, 0) for q in range(4)]
    for ci, (lo, hi, p, ld, rows, dst, ks, cs) in enumerate(cases):
        if ci < len(cases)-1: A(f's_cmp_ge_u32 s36, {hi}\ns_cbranch_scc1 p1_c{ci+1}')
        A.srd(56, p, ld*rows)
        k0 = (ci-4)*384 if ci >= 4 else 0
        A(f's_mov_b32 s37, {ld}\ns_sub_u32 s47, s36, {lo}\ns_mov_b32 s48, {k0*ld}\ns_mov_b32 s49, {dst}\ns_mov_b32 s50, {ks*KB}\ns_mov_b32 s51, {cs}')
        if ci < len(cases)-1:
            A('s_branch p1_hgo'); A.label(f'p1_c{ci+1}')
    A.label('p1_hgo')
    A('v_lshrrev_b32 v12, 2, v0\nv_mul_lo_u32 v12, v12, s37\nv_lshl_add_u32 v13, v2, 3, v10\nv_mul_lo_u32 v13, v13, s37')
    A('s_lshl_b32 s43, s47, 6\ns_add_u32 s48, s48, s43\ns_lshl_b32 s32, s37, 4\ns_lshl_b32 s33, s37, 2\ns_lshl_b32 s34, s37, 5\ns_mov_b32 s35, s34\ns_mul_i32 s52, s3, 24576\nv_add_u32 v14, s52, v1')
    A(f's_cmp_lg_u32 s49, {WF_PT}\ns_cbranch_scc1 p1_hnat\nv_mul_u32_u24 v12, 6, v12\nv_mov_b32 v13, v12\ns_mov_b32 s32, 768\ns_mov_b32 s33, 768\ns_mov_b32 s34, 1536\ns_mov_b32 s35, {92*768}')
    A.label('p1_hnat')
    A('v_add_u32 v12, v12, v11\nv_add_u32 v13, v13, v11')
    for j in range(12):
        v = 13 if j % 3 == 1 else 12
        A(f's_add_u32 s43, s48, s{33 if j % 3 == 1 else 32}\nbuffer_load_dwordx4 {vr(132+8*j,4)}, v{v}, s[56:59], s48 offen\ns_add_u32 s48, s48, s{35 if j % 3 == 2 else 34}')
        A(f'buffer_load_dwordx4 {vr(136+8*j,4)}, v{v}, s[56:59], s43 offen')
    A('v_add_u32 v6, s52, v6\nv_add_u32 v7, s52, v7')
    A('s_lshl_b32 s53, s47, 1\ns_mul_i32 s53, s53, s50\ns_add_u32 s53, s53, s49\ns_add_u32 s54, s53, s50')
    for i in range(4): A(f'v_mov_b32 v{128+i}, 0x3f803f80')
    nst[0] = 1; stamp()
    for q in range(4):
        for i in range(6): A(f's_waitcnt vmcnt({23-i})\nds_write_b128 v14, {vr(132+4*(6*q+i),4)} offset:{1024*(6*q+i)}')
        A('s_waitcnt lgkmcnt(0)')
        for j in range(3*q, 3*q+3):
            for c in range(2):
                for hh in range(2): A(f'ds_read_b64_tr_b16 {vr(24+(j*2+c)*4+hh*2,2)}, v{6+c} offset:{j*2048+hh*1024}')
        A('s_waitcnt lgkmcnt(0)')
        for j in range(3*q, 3*q+3):
            for c in range(2):
                A(f'buffer_store_dwordx4 {vr(24+(j*2+c)*4,4)}, v1, s[20:23], s{53+c} offen offset:{(j%4)*1024} sc1')
                A(mfma32(120+4*c, 24+(j*2+c)*4, 128, '0' if j == 0 else None))
            if j % 4 == 3: A('s_add_u32 s53, s53, 4096\ns_add_u32 s54, s54, 4096')
    stamp()
    A('s_cmp_eq_u32 s51, 0\ns_cbranch_scc1 p1_hdone')
    A('s_lshl_b32 s43, s47, 7\ns_add_u32 s51, s51, s43\nv_lshlrev_b32 v10, 4, v2\nv_cmp_eq_u32 vcc, 0, v3\ns_nop 7\ns_mov_b64 exec, vcc')
    for c in range(2): A(f'buffer_store_dwordx4 {vr(120+4*c,4)}, v10, s[20:23], s51 offen offset:{64*c} sc1')
    A('s_mov_b64 exec, -1')
    A.label('p1_hdone')
    A('s_waitcnt vmcnt(0) lgkmcnt(0)\ns_barrier')
    stamp()
    A('s_branch p1_spin')
    nst[0] = n0
```
